```python
import torch

def _softmax(x, axis=-1):
    return torch.softmax(x, dim=axis)
def _gelu(x):
    return torch.nn.functional.gelu(x, approximate="tanh")
def _silu(x):
    return torch.nn.functional.silu(x)
def _sigmoid(x):
    return torch.sigmoid(x)
def _layernorm(x, axis=-1, eps=1e-5):
    m = x.mean(dim=axis, keepdim=True)
    v = x.var(dim=axis, keepdim=True, unbiased=False)
    return (x - m) / torch.sqrt(v + eps)
def _scatter_add(tgt, idx, src, axis=0):
    return tgt.clone().index_add_(axis, idx, src)
def _segment_sum(src, seg, n):
    out = torch.zeros((n,) + src.shape[1:], dtype=src.dtype)
    return out.index_add_(0, seg, src)
def _pad(x, pw):
    flat = tuple(v for pair in reversed(pw) for v in pair)
    return torch.nn.functional.pad(x, flat)

kernel_name = 'recurrent_scan__mha_block_cached__moe_arch_mod__prompt'

def setup_inputs():

    _w = (lambda a: (lambda t: t.to(torch.bfloat16) if t.is_floating_point() else t)(torch.as_tensor(a)))
    def _A_setup():
        B, Sq, D = 1, 2048, 512
        H, Sk, Dh = 32, 2048, 128
        return {
            "x": _w((lambda *s: torch.randn(*s, dtype=torch.bfloat16) * 0.05)(B, Sq, D)),
            "k_cache": _w((lambda *s: torch.randn(*s, dtype=torch.bfloat16) * 1.6)(B, H, Sk, Dh)),
            "v_cache": _w((lambda *s: torch.randn(*s, dtype=torch.bfloat16) * 0.2)(B, H, Sk, Dh)),
            "wq": _w((lambda *s: torch.randn(*s, dtype=torch.bfloat16) * 1.6)(D, H * Dh) * (D ** -0.5)),
            "wo": _w((lambda *s: torch.randn(*s, dtype=torch.bfloat16) * 0.2)(H * Dh, D) * ((H * Dh) ** -0.5)),
        }
    _A_in = _A_setup()

    def _B_setup():
        B, S, D, F, C = 1, 2048, 512, 1792, 8
        return {
            "x": _w((lambda *s: torch.randn(*s, dtype=torch.bfloat16) * 0.05)(B, S, D)),
            "w_r": _w((lambda *s: torch.randn(*s, dtype=torch.bfloat16) * 0.2)(D)),
            "w_gate": _w((lambda *s: torch.randn(*s, dtype=torch.bfloat16) * 0.1)(D, F)),
            "w_up": _w((lambda *s: torch.randn(*s, dtype=torch.bfloat16) * 0.1)(D, F)),
            "w_down": _w((lambda *s: torch.randn(*s, dtype=torch.bfloat16) * 0.1)(F, D)),
        }
    _B_in = _B_setup()

    return {
        "A_x": _A_in["x"],
        "A_k_cache": _A_in["k_cache"],
        "A_v_cache": _A_in["v_cache"],
        "A_wq": _A_in["wq"],
        "A_wo": _A_in["wo"],
        "B_x": _B_in["x"],
        "B_w_r": _B_in["w_r"],
        "B_w_gate": _B_in["w_gate"],
        "B_w_up": _B_in["w_up"],
        "B_w_down": _B_in["w_down"],
    }

def reference(A_x, A_k_cache, A_v_cache, A_wq, A_wo, B_x, B_w_r, B_w_gate, B_w_up, B_w_down):
    def _A_ref(x, k_cache, v_cache, wq, wo):
        B, Sq, D = x.shape
        H, Dh = 32, 128
        q = (lambda x, *d: x.permute(*d))((x @ wq).reshape(B, Sq, H, Dh), 0, 2, 1, 3)
        scores = torch.einsum("bhqd,bhkd->bhqk", q, k_cache) * (Dh ** -0.5)
        p = _softmax(scores, axis=-1)
        o = torch.einsum("bhqk,bhkd->bhqd", p, v_cache)
        return (lambda x, *d: x.permute(*d))(o, 0, 2, 1, 3).reshape(B, Sq, H * Dh) @ wo

    def _B_ref(x, w_r, w_gate, w_up, w_down):
        B, S, D = x.shape
        C = 8
        r = x @ w_r
        idx = torch.argsort(-r, axis=-1)[:, :C]
        idx_e = (lambda x, n, axis: torch.repeat_interleave(x, n, dim=axis))(idx.reshape(B, C, 1), D, axis=2)
        x_sel = (lambda x, i, axis: torch.take_along_dim(x, i, dim=axis))(x, idx_e, axis=1)
        g = _silu(x_sel @ w_gate)
        u = x_sel @ w_up
        y = (g * u) @ w_down
        r_sel = _sigmoid((lambda x, i, axis: torch.take_along_dim(x, i, dim=axis))(r, idx, axis=1))
        y = y * r_sel.reshape(B, C, 1)
        b_off = (torch.arange(B) * S).reshape(B, 1)
        flat_idx = (idx + b_off).reshape(B * C)
        zero = (x * 0.0).reshape(B * S, D)
        upd = _scatter_add(zero, flat_idx, y.reshape(B * C, D), axis=0)
        return x + upd.reshape(B, S, D)

    x = A_x
    xn = _layernorm(x, axis=-1)
    s = _A_ref(xn, A_k_cache, A_v_cache, A_wq, A_wo)
    g = _silu(_B_ref(xn, B_w_r, B_w_gate, B_w_up, B_w_down))
    return x + s * g
```

```python
import sys, struct

NAME = "recurrent_scan__mha_block_cached__moe_arch_mod__prompt"

WS_XN = 0
WS_KEY = 2 << 20
WS_UPD = WS_KEY + 16384
WS_FLAG = WS_KEY + 32768
WS_YP = 3 << 20
WS_O = 8 << 20
WS_STAMP = 32 << 20
WS_SIZE = 268435456
OOB = 0x40000000

OPT = dict(stamp=False, nsum=2, thr=64, snake=True)
LOG2E = 1.4426950408889634


def f32bits(x):
    return struct.unpack("<I", struct.pack("<f", x))[0]


def R(p, s, n=1):
    return f"{p}{s}" if n == 1 else f"{p}[{s}:{s+n-1}]"


def is_vmem(line):
    return line.startswith("buffer_") or line.startswith("global_")


class Asm:
    def __init__(self):
        self.L = []
        self.vm = []

    def __call__(self, s):
        for line in s.split("\n"):
            line = line.strip()
            if not line:
                continue
            tag = None
            if "@" in line and not line.startswith("."):
                line, tag = [x.strip() for x in line.split("@")]
            if line.startswith("WAITVM"):
                parts = line.split(None, 2)
                last = max(i for i, t in enumerate(self.vm) if t in parts[1].split(","))
                n = len(self.vm) - 1 - last
                assert n <= 63, n
                line = f"s_waitcnt vmcnt({n})" + (" " + parts[2] if len(parts) > 2 else "")
            if is_vmem(line):
                self.vm.append(tag)
            self.L.append(line if line.endswith(":") or line.startswith(".") else "    " + line)

    def emit(self, lst):
        for x in lst:
            self(x)

    def srd(self, d, base, size, add_lo=None):
        if add_lo is None:
            self(f"s_mov_b32 s{d}, s{base}\ns_mov_b32 s{d+1}, s{base+1}")
        else:
            self(f"s_add_u32 s{d}, s{base}, {add_lo}\ns_addc_u32 s{d+1}, s{base+1}, 0")
        self(f"s_mov_b32 s{d+2}, {size}\ns_mov_b32 s{d+3}, 0x00020000")

    def wave_reduce(self, op, v, t):
        for ctl in ("quad_perm:[1,0,3,2]", "quad_perm:[2,3,0,1]", "row_half_mirror", "row_mirror"):
            self("s_nop 1")
            self(f"{op}_dpp v{v}, v{v}, v{v} {ctl} row_mask:0xf bank_mask:0xf")
        self.cross_reduce(op, [v], [t])

    def cross_reduce(self, op, vs, ts, swaps=("v_permlane16_swap_b32", "v_permlane32_swap_b32")):
        for sw in swaps:
            for v, t in zip(vs, ts):
                self(f"v_mov_b32 v{t}, v{v}")
            if len(vs) < 3:
                self("s_nop 1")
            for v, t in zip(vs, ts):
                self(f"{sw} v{v}, v{t}")
            for v, t in zip(vs, ts):
                self(f"{op} v{v}, v{v}, v{t}")

    def rbf(self, v):
        self.emit(rbf(v))


def rbf(v):
    return [f"v_cvt_pk_bf16_f32 v{v}, v{v}, v{v}", f"v_and_b32 v{v}, 0xffff0000, v{v}"]


def unpack(dst, src, n):
    out = []
    for i in range(n):
        out += [f"v_lshlrev_b32 v{dst+2*i}, 16, v{src+i}", f"v_and_b32 v{dst+2*i+1}, 0xffff0000, v{src+i}"]
    return out


def sigmoid(dst, src):
    return [f"v_mul_f32 v{dst}, {f32bits(-LOG2E):#x}, v{src}", f"v_exp_f32 v{dst}, v{dst}", "s_nop 0",
            f"v_add_f32 v{dst}, 1.0, v{dst}", f"v_rcp_f32 v{dst}, v{dst}", "s_nop 0"]


def mfma(d, A, B, c):
    return f"v_mfma_f32_16x16x32_bf16 {d}, {A}, {B}, {c}"


V_KA = 8
V_VA = 12
V_DK = 20
V_DV = 24
V_H = 26
V_T0 = 28
V_DWO = 30
V_L = 36
V_T = 40
V_NEGM = 48
V_S = 64
V_P = 96
V_O = 128
V_SX = 32
V_SXX = 48
V_DX = 64
V_DW = 72
V_XA = 76
V_WA = 80
V_CS = 96
A_Q = 0
A_K = 64
A_V = 96
A_SUM = 128
A_CS = 128
A_HK = 144
A_WF = 144
A_XF = 208
A_ONES = 240
S_X, S_WQ, S_K, S_V, S_WS = 8, 12, 16, 20, 24
S_WAVE, S_HEAD, S_QBLK, S_W4096, S_OFF = 28, 29, 30, 31, 32
S_STEP, S_XOFF, S_WOFF, S_W8192, S_PASS, S_HM, S_RET = 33, 34, 35, 36, 37, 38, 39
S_DBG, S_T, S_WO = 44, 48, 52
S_KSW, S_KSO = 34, 35
P_X, P_K, P_V, P_WQ, P_WO, P_WR, P_GATE, P_UP, P_DOWN, P_OUT, P_DBG, P_WS = 64, 66, 68, 70, 72, 76, 78, 80, 82, 84, 86, 88
S_IDX = 90

XBASE = [32768, 131072, 0]
WBASE = [98304, 114688, 65536]
QSCALE = (128 ** -0.5) * LOG2E
HK = 131072
_P8 = [0, 4, 1, 5, 2, 3, 6, 8]
WO_PAGES = _P8 + _P8 + [7, 9] + _P8 + [7, 9, 0, 4, 1, 5]


def srd(s):
    return f"s[{s}:{s+3}]"


def k_dma(j):
    return f"buffer_load_dwordx4 v{V_DK+j}, {srd(S_K)}, s{S_OFF} offen offset:{j*1024} lds"


def v_dma(j):
    return f"buffer_load_dwordx4 v{V_DV+(j&1)}, {srd(S_V)}, s{S_OFF} offen offset:{j*1024} lds"


def wo_dma(j, k):
    return f"buffer_load_dwordx4 v{V_DWO+j}, {srd(S_WO)}, s{S_KSW} offen offset:{j*1024} lds @wo{k}"


def wo_adv(k):
    if k % 4 == 3:
        return [f"s_add_u32 s{S_KSW}, s{S_KSW}, {13*32768}", f"s_and_b32 s{S_KSW}, s{S_KSW}, 0x3fffff"]
    return [f"s_add_u32 s{S_KSW}, s{S_KSW}, 32768"]


def k_read(u, kb, t):
    off = ((u >> 1) & 3) * 16384 + ((u & 1) * 32 + kb * 16) * 256
    return f"ds_read_b128 {R('a', A_K + (kb*4+t)*4, 4)}, v{V_KA+t} offset:{off}"


def v_read(u, db, hf):
    off = ((u >> 1) & 3) * 16384 + ((u & 1) * 32 + hf * 16) * 256
    return f"ds_read_b64_tr_b16 {R('a', A_V + db*4 + hf*2, 2)}, v{V_VA+db} offset:{off}"


def qk_order():
    out = []
    for qb in range(4):
        for i in range(2):
            kb = i ^ (qb & 1) if OPT["snake"] else i
            ts = range(4) if (i == 0 or not OPT["snake"]) else range(3, -1, -1)
            out += [(qb, kb, t, n == 0) for n, t in enumerate(ts)]
    return out


def exp_order():
    out = []
    for qb, kb, t, first in qk_order():
        if first:
            out += [4 * (2 * qb + kb) + i for i in range(4)]
    return out


def qk_mfmas(first_c=None):
    out = []
    for qb, kb, t, first in qk_order():
        d = R('v', V_S + 4 * (2 * qb + kb), 4)
        c = (first_c or R('v', V_NEGM + 4 * qb, 4)) if first else d
        out.append(mfma(d, R('a', A_K + (kb * 4 + t) * 4, 4), R('a', A_Q + (qb * 4 + t) * 4, 4), c))
    return out


def pv_mfmas(u, first=False):
    pb = V_P + (u & 1) * 16
    out = []
    for qb in range(OPT["nsum"] - 1, -1, -1):
        s = R('a', A_SUM + 4 * qb, 4)
        out.append(mfma(s, R('a', A_ONES, 4), R('v', pb + 4 * qb, 4), "0" if first else s))
    for db in range(8):
        for i in range(4):
            qb = 3 - i if (OPT["snake"] and db & 1) else i
            o = R('v', V_O + (qb * 8 + db) * 4, 4)
            out.append(mfma(o, R('a', A_V + db * 4, 4), R('v', pb + 4 * qb, 4), "0" if first else o))
    return out


def sm_exp(n):
    return f"v_exp_f32 v{V_T + n % 8}, v{V_S + exp_order()[n]}"


def sm_cvt(u, n):
    return f"v_cvt_pk_bf16_f32 v{V_P + (u & 1) * 16 + exp_order()[n] // 2}, v{V_T + (n-1) % 8}, v{V_T + n % 8}"


def sm_add(n):
    l = V_L + n // 8
    return f"v_add_f32 v{l}, v{l}, v{V_T + n % 8}"


def period(p, first=False, hook=False, dma="kv", wok=None, kread=True):
    M = qk_mfmas() + pv_mfmas(p, first)
    n = len(M)
    gaps = [None] * n
    for i in range(8):
        gaps[i] = ("D", [v_read(p, i, 0), v_read(p, i, 1)])
    even = (p % 2 == 0)
    fixed = {}
    if even:
        fixed[32] = ["s_barrier"]
    d0, d1 = 36, 54
    for j in range(4):
        fixed[d0 + 6 * j] = [wo_dma(j, wok) if dma == "wo" else (k_dma if even else v_dma)(j)]
    A0 = 8 * OPT["nsum"]
    kq = [k_read(p + 2, kb, t) for kb in range(2) for t in range(4)] if kread else []
    ne = 0
    q = []
    LAG = 4
    for g in range(8, n):
        if g in fixed:
            gaps[g] = ("F", fixed[g])
            continue
        oldest = min([x[1] for x in q], default=ne)
        if ne % 2 == 1:
            oldest = min(oldest, ne - 1)
        can_e = ne < 32 and g >= 4 * (ne // 4) + 3 + LAG and (ne - oldest) < 8
        k_ok = bool(kq) and g > 32 and g <= n - 8
        want_x = len(q) + (1 if k_ok else 0) >= 2
        if can_e and not want_x:
            gaps[g] = ("E", [sm_exp(ne)])
            if ne >= A0:
                q.append((sm_add(ne), ne))
            if ne % 2 == 1:
                q.append((sm_cvt(p + 1, ne), ne - 1))
            ne += 1
        else:
            items = []
            kind = "V"
            if k_ok:
                items.append(kq.pop(0))
                kind = "D"
            while q and len(items) < 2:
                items.append(q.pop(0)[0])
            gaps[g] = (kind, items)
    assert ne == 32 and not q and not kq, (ne, q, kq)
    slot = (p // 2 + 3) & 3 if even else ((p + 1) // 2 + 2) & 3
    page = slot + (0 if even else 4)
    if dma == "wo":
        assert page == WO_PAGES[wok]
    salu = [("s_waitcnt vmcnt(8) lgkmcnt(0)" if even else "s_waitcnt lgkmcnt(0)", 26, 31),
            (f"s_add_u32 m0, s{S_W4096}, {page*16384}", 8, d0 - 1),
            ("s_waitcnt lgkmcnt(0)", n - 3, n - 1)]
    if hook:
        salu.append((f"s_add_u32 s{S_HM}, s{S_HM}, s{S_HM}", n - 5, n - 1))
    if dma == "wo":
        adv = wo_adv(wok)
        if len(adv) == 2:
            salu.append((adv[1], d1 + 5, n - 4))
        salu.append((adv[0], d1 + 1, d1 + 4))
    elif not even:
        salu.append((f"s_add_u32 s{S_OFF}, s{S_OFF}, 16384", d1 + 1, n - 6))
    used = set()
    pre = {}
    for text, lo, hi in salu:
        for g in range(hi, lo - 1, -1):
            if g not in used and gaps[g][0] in ("E", "V"):
                used.add(g)
                pre[g] = text
                break
        else:
            raise RuntimeError("no SALU slot for " + text)
    out = []
    for g in range(n):
        out.append(M[g])
        if g in pre:
            out.append(pre[g])
        out += gaps[g][1]
    return out


def stamp(a, k):
    if OPT["stamp"]:
        a(f"s_memrealtime s[40:41]\ns_waitcnt lgkmcnt(0)\nv_writelane_b32 v7, s40, {k}")
        a(f"s_memtime s[40:41]\ns_waitcnt lgkmcnt(0)\nv_writelane_b32 v7, s40, {k+16}")


def ln_stream():
    WR = 112

    def row(raw, X, acc, t, m, key, n):
        o = []

        def red(v):
            r = [f"v_add_f32_dpp v{v}, v{v}, v{v} {c} row_mask:0xf bank_mask:0xf"
                 for c in ("quad_perm:[1,0,3,2]", "quad_perm:[2,3,0,1]", "row_half_mirror", "row_mirror")]
            for sw in ("v_permlane16_swap_b32", "v_permlane32_swap_b32"):
                r += [f"v_mov_b32 v{t}, v{v}", f"{sw} v{v}, v{t}", f"v_add_f32 v{v}, v{v}, v{t}"]
            return r
        o += unpack(X, raw, 4)
        o += [f"v_add_f32 v{m}, v{X}, v{X+1}"] + [f"v_add_f32 v{m}, v{m}, v{X+i}" for i in range(2, 8)]
        o += red(m)
        o += [f"v_mul_f32 v{m}, {f32bits(1/512):#x}, v{m}"]
        for i in range(8):
            o += [f"v_sub_f32 v{t}, v{X+i}, v{m}", f"v_mul_f32 v{acc}, v{t}, v{t}" if i == 0 else f"v_fmac_f32 v{acc}, v{t}, v{t}"]
        o += red(acc)
        o += [f"v_mul_f32 v{acc}, {f32bits(1/512):#x}, v{acc}"] + rbf(m) + rbf(acc)
        o += [f"v_add_f32 v{acc}, {f32bits(1e-5):#x}, v{acc}"] + rbf(acc) + [f"v_sqrt_f32 v{acc}, v{acc}"] + rbf(acc)
        o += [f"v_rcp_f32 v{acc}, v{acc}"]
        o += [f"v_sub_f32 v{X+i}, v{X+i}, v{m}" for i in range(8)]
        o += [f"v_cvt_pk_bf16_f32 v{raw+i}, v{X+2*i}, v{X+2*i+1}" for i in range(4)]
        o += unpack(X, raw, 4)
        o += [f"v_mul_f32 v{X+i}, v{X+i}, v{acc}" for i in range(8)]
        o += [f"v_cvt_pk_bf16_f32 v{raw+i}, v{X+2*i}, v{X+2*i+1}" for i in range(4)]
        o += [f"buffer_store_dwordx4 v[{raw}:{raw+3}], v29, {srd(S_WS)}, s60 offen offset:{1024*n} sc1 @pub"]
        o += unpack(X, raw, 4)
        o += [f"v_mul_f32 v{acc}, v{X}, v{WR}"] + [f"v_fmac_f32 v{acc}, v{X+i}, v{WR+i}" for i in range(1, 8)]
        o += red(acc)
        o += [f"v_cvt_pk_bf16_f32 v{acc}, v{acc}, v{acc}", f"v_ashrrev_i32 v{t}, 31, v{acc}", f"v_or_b32 v{t}, 0x80000000, v{t}",
              f"v_xor_b32 v{acc}, v{acc}, v{t}", f"v_and_b32 v{acc}, 0xffff0000, v{acc}", f"v_or_b32 v{key}, s{62+n}, v{acc}"]
        return o
    A = row(84, 96, 120, 122, 124, 126, 0)
    B = row(88, 104, 121, 123, 125, 127, 1)
    w = unpack(WR, 92, 4)
    G = [w[i:i + 2] for i in range(0, 8, 2)]
    G += [[x, y] for x, y in zip(A, B)]
    G += [[f"buffer_store_dwordx2 v[126:127], v27, {srd(S_WS)}, s61 offen sc1 @pub"]]
    return G


def stats_stream():
    ops = []
    for qb in range(4):
        m, d = V_SX + 4 * qb, V_SXX + 4 * qb
        t = m + 1
        o = [f"v_cndmask_b32 v{d}, v{d}, v{d+1}, s[92:93]", f"v_cndmask_b32 v{d+2}, v{d+2}, v{d+3}, s[92:93]",
             f"v_cndmask_b32 v{d}, v{d}, v{d+2}, s[94:95]", f"v_cndmask_b32 v{d}, 0, v{d}, s[96:97]"]
        for sw in ("v_permlane16_swap_b32", "v_permlane32_swap_b32"):
            o += [f"v_mov_b32 v{t}, v{d}", f"{sw} v{d}, v{t}", f"v_add_f32 v{d}, v{d}, v{t}"]
        o += [f"v_mul_f32 v{m}, {f32bits(-1/512):#x}, v{m}", f"v_mul_f32 v{d}, {f32bits(1/512):#x}, v{d}",
              f"v_fma_f32 v{d}, -v{m}, v{m}, v{d}", f"v_max_f32 v{d}, 0, v{d}"]
        o += rbf(m) + rbf(d) + [f"v_add_f32 v{d}, {f32bits(1e-5):#x}, v{d}"] + rbf(d) + [f"v_sqrt_f32 v{d}, v{d}"] + rbf(d)
        o += [f"v_rcp_f32 v{d}, v{d}", f"v_mul_f32 v{m+2}, {f32bits(QSCALE):#x}, v{d}"]
        ops.append(o)
    G = []
    for k in range(len(ops[0])):
        G += [[ops[0][k], ops[1][k]], [ops[2][k], ops[3][k]]]
    return G


def poll(a, name, load, check):
    a(f"s_mov_b32 s57, 0\nL_{name}_chk:")
    a.emit(check)
    a(f"s_cbranch_scc1 L_{name}_ok")
    a(f"s_add_u32 s57, s57, 1\ns_cmp_gt_u32 s57, 0x40000\ns_cbranch_scc1 L_{name}_ok")
    a("s_sleep 2")
    a(load)
    a("s_waitcnt vmcnt(0)")
    a(f"s_branch L_{name}_chk\nL_{name}_ok:")


def gen_hooks(a):
    dbg_load = f"buffer_load_dword v{V_H}, v5, {srd(S_DBG)}, 0 offen sc1"
    dbg_addr = "v_and_b32 v5, 31, v0\nv_lshlrev_b32 v5, 2, v5"
    keys_chk = [f"v_cmp_ne_u32 vcc, 0, v{V_H}", "s_nop 0", "s_bfe_u32 s42, vcc_lo, 0x80008", "s_cmp_eq_u32 s42, 0xff"]
    S = V_S
    a("L_hook:")
    steps = [10, 11, 20, 21, 22, 23, 24, 25, 26, 30, 31, 32, 33, 34]
    for s in steps:
        a(f"s_cmp_eq_u32 s{S_STEP}, {s}\ns_cbranch_scc1 L_h{s}")
    a("s_branch L_hook_ret")

    def done(nxt):
        a(f"s_mov_b32 s{S_STEP}, {nxt}\ns_branch L_hook_ret")
    a("L_h10:")
    a(dbg_addr)
    poll(a, "h10", dbg_load, [f"v_readlane_b32 s42, v{V_H}, 0", "s_nop 3", "s_cmp_eq_u32 s42, 256"])
    a(f"v_lshlrev_b32 v5, 5, v0\ns_mov_b32 s42, {WS_KEY}")
    a(f"buffer_load_dwordx4 a[{A_HK}:{A_HK+3}], v5, {srd(S_WS)}, s42 offen sc1")
    a(f"buffer_load_dwordx4 a[{A_HK+4}:{A_HK+7}], v5, {srd(S_WS)}, s42 offen offset:16 sc1")
    done(11)
    a("L_h11:")
    for i in range(8):
        a(f"v_accvgpr_read_b32 v{S+i}, a{A_HK+i}")
    a(f"v_mov_b32 v{S+10}, 0")
    for k in range(8):
        m = S + 8
        a(f"v_max3_u32 v{m}, v{S}, v{S+1}, v{S+2}\nv_max3_u32 v{m}, v{m}, v{S+3}, v{S+4}\nv_max3_u32 v{m}, v{m}, v{S+5}, v{S+6}\nv_max_u32 v{m}, v{m}, v{S+7}")
        a.wave_reduce("v_max_u32", m, S + 9)
        if k < 7:
            for i in range(0, 8, 4):
                for j in range(4):
                    a(f"v_cmp_ne_u32 s[{92+2*j}:{93+2*j}], v{S+i+j}, v{m}")
                for j in range(4):
                    a(f"v_cndmask_b32 v{S+i+j}, 0, v{S+i+j}, s[{92+2*j}:{93+2*j}]")
        a(f"v_cmp_eq_u32 vcc, {k}, v1\ns_nop 1\nv_cndmask_b32 v{S+10}, v{S+10}, v{m}, vcc")
    a(f"v_lshlrev_b32 v5, 2, v0\nv_add_u32 v5, {HK}, v5\nds_write_b32 v5, v{S+10}\ns_waitcnt lgkmcnt(0)\ns_barrier")
    a(f"v_bfe_u32 v5, v1, 3, 2\nv_lshlrev_b32 v5, 8, v5\nv_and_b32 v6, 7, v1\nv_lshl_add_u32 v5, v6, 2, v5\nv_add_u32 v5, {HK}, v5")
    a(f"ds_read_b32 v{S}, v5\nv_mov_b32 v{S+10}, 0\ns_waitcnt lgkmcnt(0)")
    for k in range(8):
        m = S + 8
        a(f"v_mov_b32 v{m}, v{S}")
        for ctl in ("quad_perm:[1,0,3,2]", "quad_perm:[2,3,0,1]", "row_half_mirror", "row_mirror"):
            a(f"s_nop 1\nv_max_u32_dpp v{m}, v{m}, v{m} {ctl} row_mask:0xf bank_mask:0xf")
        a.cross_reduce("v_max_u32", [m], [S + 9], swaps=("v_permlane16_swap_b32",))
        a(f"v_cmp_ne_u32 s[92:93], v{S}, v{m}\nv_cmp_eq_u32 vcc, {k}, v0\ns_nop 0\nv_cndmask_b32 v{S}, 0, v{S}, s[92:93]\nv_cndmask_b32 v{S+10}, v{S+10}, v{m}, vcc")
    a(f"v_lshlrev_b32 v5, 2, v0\nv_mov_b32 v6, {OOB}\nv_cmp_gt_u32 vcc, 8, v0\ns_nop 1\nv_cndmask_b32 v5, v6, v5, vcc")
    a(f"buffer_store_dword v{S+10}, v5, {srd(S_DBG)}, 0 offen offset:32 sc1")
    done(0)
    for st, ptr, base in ((20, P_GATE, HK), (21, P_UP, HK + 16384)):
        a(f"L_h{st}:")
        a.srd(S_T, ptr, 512 * 1792 * 2)
        a("v_lshrrev_b32 v5, 1, v1\nv_mul_u32_u24 v5, 3584, v5\nv_and_b32 v6, 1, v1\nv_lshl_add_u32 v5, v6, 4, v5")
        a(f"s_mul_i32 s42, s{S_WAVE}, {128*3584}\ns_lshl_b32 s43, s2, 5\ns_add_u32 s42, s42, s43\ns_add_u32 m0, s{S_W4096}, {base}")
        for j in range(4):
            if j:
                a(f"s_add_u32 s42, s42, {32*3584 - 1024}")
            else:
                a("s_nop 0")
            a(f"buffer_load_dwordx4 v5, {srd(S_T)}, s42 offen offset:{j*1024} lds")
        done(st + 1)
    a("L_h22:")
    a(dbg_addr)
    a(dbg_load)
    done(23)
    a("L_h23:")
    a(dbg_addr)
    poll(a, "h23", dbg_load, keys_chk)
    a(f"v_and_b32 v5, 7, v1\nv_lshl_add_u32 v5, v5, 2, 32\nds_bpermute_b32 v6, v5, v{V_H}\ns_lshl_b32 s42, s{S_WAVE}, 8\ns_waitcnt lgkmcnt(0)")
    a(f"v_and_b32 v6, 0x7ff, v6\nv_sub_u32 v6, 2047, v6\nv_lshlrev_b32 v6, 10, v6\nv_lshl_add_u32 v6, v4, 4, v6")
    assert WS_XN == 0
    for ks in range(4):
        a(f"buffer_load_dwordx4 a[{A_HK+4*ks}:{A_HK+4*ks+3}], v6, {srd(S_WS)}, s42 offen offset:{ks*64} sc1")
    done(24)
    a("L_h24:")
    a("v_lshrrev_b32 v5, 2, v3\nv_lshl_add_u32 v5, v4, 3, v5\nv_lshlrev_b32 v5, 5, v5\nv_and_b32 v6, 3, v3\nv_lshl_add_u32 v5, v6, 3, v5")
    a(f"v_lshl_add_u32 v5, v2, 12, v5\nv_add_u32 v5, {HK}, v5")
    for m in range(2):
        for ks in range(4):
            for hf in range(2):
                d = S + m * 16 + ks * 4 + hf * 2
                a(f"ds_read_b64_tr_b16 v[{d}:{d+1}], v5 offset:{m*16384 + ks*1024 + hf*128}")
    a.srd(S_T, P_DOWN, 1792 * 512 * 2)
    a(f"v_lshlrev_b32 v6, 4, v1\nv_add_u32 v5, {HK}, v6\nv_lshl_add_u32 v{V_H}, v2, 12, v5")
    for m in range(2):
        a(f"s_waitcnt lgkmcnt({8 - 8*m})")
        for ks in range(4):
            d = R('v', V_T + 4 * m, 4)
            a(mfma(d, R('v', S + m * 16 + ks * 4, 4), R('a', A_HK + 4 * ks, 4), "0" if ks == 0 else d))
    a(f"s_lshl_b32 s42, s2, 14\ns_add_u32 s42, s42, s{S_W4096}\ns_add_u32 m0, s{S_W4096}, {HK + 16384}\ns_nop 5")
    a(f"ds_write_b128 v{V_H}, v[{V_T}:{V_T+3}]\nds_write_b128 v{V_H}, v[{V_T+4}:{V_T+7}] offset:1024")
    a("s_waitcnt lgkmcnt(0)\ns_barrier")
    for w in range(4):
        for m in range(2):
            d = S + (w * 2 + m) * 4
            a(f"ds_read_b128 v[{d}:{d+3}], v5 offset:{w*4096 + m*1024}")
    for j in range(4):
        a(f"buffer_load_dwordx4 v6, {srd(S_T)}, s42 offen offset:{j*1024} lds")
    a("s_waitcnt lgkmcnt(0)")
    for i in range(8):
        a(f"v_add_f32 v{S+i}, v{S+i}, v{S+8+i}\nv_add_f32 v{S+16+i}, v{S+16+i}, v{S+24+i}")
    for i in range(8):
        a(f"v_add_f32 v{S+i}, v{S+i}, v{S+16+i}")
    for i in range(8):
        a.rbf(S + i)
    sg = [sigmoid(S + 8 + i, S + i) for i in range(4)]
    for k in range(6):
        for i in range(4):
            if not sg[i][k].startswith("s_nop"):
                a(sg[i][k])
    for i in range(4):
        a(f"v_mul_f32 v{S+i}, v{S+i}, v{S+8+i}")
    for i in range(4):
        a.rbf(S + i)
        a(f"v_mul_f32 v{S+i}, v{S+i}, v{S+4+i}")
    a(f"v_cvt_pk_bf16_f32 v{V_H}, v{S}, v{S+1}\nv_cvt_pk_bf16_f32 v{V_H+1}, v{S+2}, v{S+3}")
    done(25)
    a("L_h25:")
    a("v_lshrrev_b32 v5, 2, v1\nv_lshlrev_b32 v5, 10, v5\nv_and_b32 v6, 3, v1\nv_lshl_add_u32 v5, v6, 3, v5")
    a(f"v_lshl_add_u32 v5, v2, 8, v5\nv_add_u32 v5, {HK + 16384}, v5")
    for i in range(8):
        a(f"ds_read_b64_tr_b16 a[{A_HK+2*i}:{A_HK+2*i+1}], v5 offset:{i*32}")
    a("v_and_b32 v5, 7, v1\nv_lshlrev_b32 v5, 11, v5\nv_lshl_add_u32 v5, v4, 4, v5\nv_lshl_add_u32 v5, v2, 9, v5\nv_bfe_u32 v6, v1, 3, 1\nv_lshl_add_u32 v5, v6, 6, v5")
    a(f"v_cmp_eq_u32 vcc, 1, v6\ns_lshl_b32 s42, s2, 14\ns_add_u32 s42, s42, {WS_YP}\ns_waitcnt lgkmcnt(0)")
    for i in range(8):
        a(f"v_mfma_f32_16x16x16_bf16 v[{S+4*i}:{S+4*i+3}], a[{A_HK+2*i}:{A_HK+2*i+1}], v[{V_H}:{V_H+1}], 0")
    a("s_nop 2")
    for i in range(0, 8, 2):
        for r in range(4):
            a(f"v_cndmask_b32 v{S+4*i+r}, v{S+4*i+r}, v{S+4*i+4+r}, vcc")
        a(f"buffer_store_dwordx4 v[{S+4*i}:{S+4*i+3}], v5, {srd(S_WS)}, s42 offen offset:{i*64} sc1")
    a("s_nop 1")
    done(26)
    a("L_h26:")
    a(f"v_mov_b32 v5, 1\nbuffer_atomic_add v5, v{V_T0}, {srd(S_DBG)}, 0 offen offset:4")
    done(0)
    a("L_h30:")
    a(dbg_addr)
    a(dbg_load)
    done(31)

    def part_addr():
        a(f"v_lshrrev_b32 v5, 4, v0\nv_mul_u32_u24 v5, {7*16384}, v5\nv_lshl_add_u32 v5, v3, 4, v5")
        a(f"s_sub_u32 s42, s2, 112\ns_lshl_b32 s42, s42, 8\ns_add_u32 s42, s42, {WS_YP}")
    a("L_h31:")
    a(dbg_addr)
    poll(a, "h31", dbg_load, [f"v_readlane_b32 s42, v{V_H}, 1", "s_nop 3", "s_cmp_eq_u32 s42, 112"])
    part_addr()
    for i in range(4):
        a(f"buffer_load_dwordx4 a[{A_HK+4*i}:{A_HK+4*i+3}], v5, {srd(S_WS)}, s42 offen sc1\ns_add_u32 s42, s42, 16384")
    done(32)
    a("L_h32:")
    part_addr()
    a(f"s_add_u32 s42, s42, {4*16384}")
    for i in range(4, 7):
        a(f"buffer_load_dwordx4 a[{A_HK+4*i}:{A_HK+4*i+3}], v5, {srd(S_WS)}, s42 offen sc1\ns_add_u32 s42, s42, 16384")
    done(33)
    a("L_h33:")
    for i in range(28):
        a(f"v_accvgpr_read_b32 v{S+i}, a{A_HK+i}")
    for i in range(1, 7):
        for r in range(4):
            a(f"v_add_f32 v{S+r}, v{S+r}, v{S+4*i+r}")
    a.cross_reduce("v_add_f32", [S + r for r in range(4)], [S + 4 + r for r in range(4)])
    a(f"v_lshlrev_b32 v5, 4, v0\nv_add_u32 v5, {HK}, v5\nds_write_b128 v5, v[{S}:{S+3}]")
    a(f"s_sub_u32 s42, s2, 112\ns_lshr_b32 s43, s42, 3\ns_add_u32 s43, s43, 8\nv_readlane_b32 s43, v{V_H}, s43\ns_nop 1")
    a(f"v_mov_b32 v6, s43\nv_ashrrev_i32 v{S+20}, 31, v6\nv_not_b32 v{S+20}, v{S+20}\nv_or_b32 v{S+20}, 0x80000000, v{S+20}\nv_xor_b32 v6, v6, v{S+20}\nv_and_b32 v6, 0xffff0000, v6")
    a.emit(sigmoid(S + 20, 6))
    a.rbf(S + 20)
    a(f"v_lshlrev_b32 v5, 4, v3\nv_add_u32 v5, {HK}, v5\ns_waitcnt lgkmcnt(0)\ns_barrier")
    for w in range(4):
        a(f"ds_read_b128 v[{S+4*w}:{S+4*w+3}], v5 offset:{w*1024}")
    a(f"v_lshlrev_b32 v5, 3, v0\nv_mov_b32 v6, {OOB}\nv_cmp_gt_u32 vcc, 16, v0\ns_lshl_b32 s42, s42, 7\ns_add_u32 s42, s42, {WS_UPD}\nv_cndmask_b32 v5, v6, v5, vcc")
    a("s_waitcnt lgkmcnt(0)")
    for r in range(4):
        a(f"v_add_f32 v{S+r}, v{S+r}, v{S+4+r}\nv_add_f32 v{S+8+r}, v{S+8+r}, v{S+12+r}\nv_add_f32 v{S+r}, v{S+r}, v{S+8+r}")
        a.rbf(S + r)
        a(f"v_mul_f32 v{S+r}, v{S+r}, v{S+20}")
    a(f"v_cvt_pk_bf16_f32 v{S+4}, v{S}, v{S+1}\nv_cvt_pk_bf16_f32 v{S+5}, v{S+2}, v{S+3}")
    a(f"buffer_store_dwordx2 v[{S+4}:{S+5}], v5, {srd(S_WS)}, s42 offen sc1")
    done(34)
    a("L_h34:")
    a(f"s_and_b32 s42, s2, 7\ns_lshl_b32 s42, s42, 2\nv_mov_b32 v5, 1\nbuffer_atomic_add v5, v{V_T0}, {srd(S_DBG)}, s42 offen offset:64")
    done(0)
    a("L_hook_ret:")
    a(f"s_cmp_eq_u32 s{S_RET}, 0\ns_cbranch_scc1 L_retA")
    a(f"s_cmp_lg_u32 s{S_HM}, 0\ns_cbranch_scc1 L_loop\ns_branch L_last")


def hmask(hooks):
    m = 0
    for h in list(hooks) + [13]:
        m |= 1 << (31 - h)
    return m


def kv_first():
    G = []
    for tile in range(2):
        G.append(("S", f"s_add_u32 m0, s{S_W4096}, {tile*16384}"))
        G += [("D", k_dma(j) + f" @kv{tile}") for j in range(4)]
        G.append(("S", f"s_add_u32 m0, s{S_W4096}, {65536 + tile*16384}"))
        G += [("D", v_dma(j) + f" @kv{tile}") for j in range(4)]
        G.append(("S", f"s_add_u32 s{S_OFF}, s{S_OFF}, 16384"))
    return G


def kv2():
    G = [("S", f"s_add_u32 m0, s{S_W4096}, {2*16384}")]
    G += [("D", k_dma(j)) for j in range(4)]
    G.append(("S", f"s_add_u32 m0, s{S_W4096}, {65536 + 2*16384}"))
    G += [("D", v_dma(j)) for j in range(4)]
    G.append(("S", f"s_add_u32 s{S_OFF}, s{S_OFF}, 16384"))
    return G


def flat(a, G):
    for kind, ins in G:
        a(ins)
        if " m0," in ins:
            a("s_nop 0")


def gen_kernel(a):
    label = NAME + "_kernel"
    a(f".globl {label}\n.p2align 8\n.type {label},@function\n{label}:")
    a("s_cmp_ge_u32 s2, 256\ns_cbranch_scc1 L_end")
    a("s_load_dwordx16 s[64:79], s[0:1], 0\ns_load_dwordx8 s[80:87], s[0:1], 64\ns_load_dwordx2 s[88:89], s[0:1], 96")
    if OPT["stamp"]:
        a("v_mov_b32 v7, 0")
    a(f"v_and_b32 v1, 63, v0\nv_lshrrev_b32 v2, 6, v0\nv_and_b32 v3, 15, v0\nv_readfirstlane_b32 s{S_WAVE}, v2\nv_lshrrev_b32 v4, 4, v1")
    a(f"s_and_b32 s{S_HEAD}, s2, 7\ns_lshl_b32 s{S_HEAD}, s{S_HEAD}, 2\ns_bfe_u32 s3, s2, 0x20003\ns_add_u32 s{S_HEAD}, s{S_HEAD}, s3")
    a(f"s_lshr_b32 s{S_QBLK}, s2, 5")
    a(f"s_lshl_b32 s{S_W4096}, s{S_WAVE}, 12\ns_lshl_b32 s{S_W8192}, s{S_WAVE}, 13")
    a("v_lshlrev_b32 v30, 4, v1\nv_lshl_add_u32 v29, v2, 11, v30\ns_lshl_b32 s60, s2, 13")
    a("v_lshrrev_b32 v5, 3, v1\nv_lshlrev_b32 v5, 10, v5\nv_and_b32 v6, 7, v1\nv_xor_b32 v6, v6, v4")
    a(f"v_lshl_add_u32 v{V_DX}, v6, 4, v5\nv_xor_b32 v{V_DX+1}, 64, v{V_DX}")
    for j in range(7, 0, -1):
        a(f"v_add_u32 v{V_DX+j}, {8192*j - 1024*(j&3)}, v{V_DX+(j&1)}")
    a(f"v_lshl_add_u32 v5, v2, 4, v4\nv_lshlrev_b32 v5, 13, v5\nv_lshlrev_b32 v6, 2, v4\nv_xor_b32 v6, v6, v3\nv_lshl_add_u32 v{V_DW}, v6, 4, v5")
    for j in range(1, 4):
        a(f"v_add_u32 v{V_DW+j}, {32768*j - 1024*j}, v{V_DW}")
    a(f"s_lshl_b32 s{S_XOFF}, s{S_QBLK}, 18\ns_lshl_b32 s3, s{S_WAVE}, 16\ns_add_u32 s{S_XOFF}, s{S_XOFF}, s3")
    a(f"s_lshl_b32 s{S_WOFF}, s{S_HEAD}, 8")
    a("s_waitcnt lgkmcnt(0)")
    stamp(a, 0)
    a.srd(S_X, P_X, 2097152)
    a.srd(S_WQ, P_WQ, 512 * 4096 * 2)

    def chunk_dma(c):
        sl = c % 3
        G = [("S", f"s_add_u32 m0, s{S_W4096}, {WBASE[sl]}")]
        for j in range(4):
            G.append(("D", f"buffer_load_dwordx4 v{V_DW+j}, {srd(S_WQ)}, s{S_WOFF} offen offset:{j*1024} lds @c{c}"))
        for hh in range(2):
            G.append(("S", f"s_add_u32 m0, s{S_W8192}, {XBASE[sl] + hh*4096}"))
            for j in range(4 * hh, 4 * hh + 4):
                G.append(("D", f"buffer_load_dwordx4 v{V_DX+j}, {srd(S_X)}, s{S_XOFF} offen offset:{(j&3)*1024} lds @c{c}"))
        G.append(("S", f"s_add_u32 s{S_WOFF}, s{S_WOFF}, {64*8192}"))
        G.append(("S", f"s_add_u32 s{S_XOFF}, s{S_XOFF}, 128"))
        return G
    flat(a, chunk_dma(0))
    a.srd(S_T, P_WR, 1024)
    a(f"buffer_load_dwordx4 v[84:87], v29, {srd(S_X)}, s60 offen @ln")
    a(f"buffer_load_dwordx4 v[88:91], v29, {srd(S_X)}, s60 offen offset:1024 @ln")
    a(f"buffer_load_dwordx4 v[92:95], v30, {srd(S_T)}, 0 offen @ln")
    flat(a, chunk_dma(1))
    flat(a, chunk_dma(2))
    a(f"s_lshl_b32 s3, s{S_HEAD}, 19")
    a.srd(S_K, P_K, 524288, add_lo="s3")
    a.srd(S_V, P_V, 524288, add_lo="s3")
    a.srd(S_WS, P_WS, WS_SIZE)
    a.srd(S_DBG, P_DBG, 256)
    a.srd(S_WO, P_WO, 4096 * 512 * 2)
    a(f"v_mov_b32 v6, {OOB}\nv_cmp_eq_u32 vcc, 0, v0\nv_cmp_eq_u32 s[92:93], 0, v1\nv_lshlrev_b32 v5, 3, v2\nv_cndmask_b32 v{V_T0}, v6, 0, vcc\nv_cndmask_b32 v27, v6, v5, s[92:93]")
    a(f"s_lshl_b32 s61, s2, 5\ns_add_u32 s61, s61, {WS_KEY}")
    a(f"s_lshl_b32 s62, s2, 3\ns_lshl_b32 s3, s{S_WAVE}, 1\ns_add_u32 s62, s62, s3\ns_sub_u32 s62, 2047, s62\ns_sub_u32 s63, s62, 1")
    a(f"s_lshr_b32 s59, s2, 3\ns_lshl_b32 s59, s59, 7\ns_and_b32 s3, s2, 7\ns_lshl_b32 s3, s3, 2\ns_add_u32 s59, s59, s3\ns_add_u32 s59, s59, {WS_FLAG}")
    a(f"v_mov_b32 v26, 0\nbuffer_store_dword v26, v{V_T0}, {srd(S_WS)}, s59 offen sc1 @pub")
    a(f"s_mov_b32 s{S_STEP}, 0\ns_mov_b32 s{S_HM}, {hmask([]):#x}\ns_mov_b32 s{S_PASS}, 0")
    a(f"s_cmp_lt_u32 s2, 176\ns_cselect_b32 s{S_STEP}, 30, s{S_STEP}\ns_cselect_b32 s{S_HM}, {hmask([9,10,11,12,13]):#x}, s{S_HM}")
    a(f"s_cmp_lt_u32 s2, 112\ns_cselect_b32 s{S_STEP}, 20, s{S_STEP}\ns_cselect_b32 s{S_HM}, {hmask([0,1,3,4,5,6,7]):#x}, s{S_HM}")
    a(f"s_cmp_eq_u32 s2, 255\ns_cselect_b32 s{S_STEP}, 10, s{S_STEP}\ns_cselect_b32 s{S_HM}, {hmask([0,1]):#x}, s{S_HM}")
    a("v_lshrrev_b32 v5, 1, v3\nv_xor_b32 v5, v5, v4\nv_lshlrev_b32 v5, 4, v5\nv_lshl_add_u32 v5, v3, 7, v5")
    a(f"v_lshl_add_u32 v{V_XA}, v2, 13, v5\nv_xor_b32 v{V_XA+1}, 64, v{V_XA}")
    a(f"v_add_u32 v{V_XA+2}, 131072, v{V_XA}\nv_add_u32 v{V_XA+3}, 131072, v{V_XA+1}")
    a("v_lshrrev_b32 v5, 2, v3\nv_lshl_add_u32 v5, v4, 3, v5\nv_lshlrev_b32 v5, 8, v5\nv_add_u32 v5, 65536, v5\nv_lshlrev_b32 v6, 6, v2")
    a(f"v_lshl_add_u32 v{V_WA}, v3, 4, v5\nv_xor_b32 v{V_WA}, v{V_WA}, v6")
    for t in range(1, 4):
        a(f"v_xor_b32 v{V_WA+t}, {64*t}, v{V_WA}")
    a(f"v_xor_b32 v5, v4, v3\nv_lshlrev_b32 v5, 4, v5\nv_lshl_add_u32 v{V_KA}, v3, 8, v5\nv_xor_b32 v{V_KA}, v{V_KA}, v6")
    for t in range(1, 4):
        a(f"v_xor_b32 v{V_KA+t}, {64*t}, v{V_KA}")
    a("v_lshrrev_b32 v5, 2, v1\nv_and_b32 v6, 7, v5\nv_lshlrev_b32 v6, 5, v6\nv_lshl_add_u32 v5, v5, 8, v6\nv_and_b32 v6, 3, v1")
    a(f"v_lshl_add_u32 v5, v6, 3, v5\nv_add_u32 v{V_VA}, 65536, v5")
    for db in range(1, 8):
        a(f"v_xor_b32 v{V_VA+db}, {32*db}, v{V_VA}")
    a("v_lshl_add_u32 v5, v2, 4, v4\nv_lshlrev_b32 v5, 8, v5\nv_xor_b32 v6, v3, v4")
    a(f"v_lshl_add_u32 v{V_DK}, v6, 4, v5")
    for j in range(1, 4):
        a(f"v_xor_b32 v{V_DK+j}, {64*j}, v{V_DK}")
    a(f"v_lshlrev_b32 v6, 1, v4\nv_xor_b32 v6, v6, v3\nv_lshl_add_u32 v{V_DV}, v6, 4, v5\nv_xor_b32 v{V_DV+1}, 128, v{V_DV}")
    a("v_and_b32 v5, 3, v1\nv_cmp_eq_u32 vcc, 0, v5\nv_mov_b32 v6, 0x3f803f80\ns_nop 0\nv_cndmask_b32 v5, 0, v6, vcc")
    for i in range(4):
        a(f"v_accvgpr_write_b32 a{A_ONES+i}, v5")
    a("s_mov_b32 s92, 0xaaaaaaaa\ns_mov_b32 s93, s92\ns_mov_b32 s94, 0xcccccccc\ns_mov_b32 s95, s94\ns_mov_b32 s96, 0x00f0000f\ns_mov_b32 s97, 0xf0000f00")
    a(f"v_lshl_add_u32 v30, v2, 13, v30\nv_add_u32 v30, {HK}, v30\nv_lshlrev_b32 v31, 8, v4\nv_lshl_add_u32 v31, v2, 13, v31")
    a(f"s_mov_b32 s{S_OFF}, 0")

    def step_reads(s):
        c, ks = s // 2, s % 2
        sl = c % 3
        b = s % 2
        out = []
        for qb in range(4):
            if sl == 1:
                reg, off = V_XA + 2 + ks, qb * 2048
            else:
                reg, off = V_XA + ks, XBASE[sl] + qb * 2048
            out.append(f"ds_read_b128 {R('a', A_XF + b*16 + qb*4, 4)}, v{reg} offset:{off}")
        for t in range(4):
            for half in range(2):
                for hf in range(2):
                    off = WBASE[sl] - 65536 + (32 * ks + 4 * hf) * 256 + 8 * half
                    out.append(f"ds_read_b64_tr_b16 {R('a', A_WF + b*32 + (2*t+half)*4 + hf*2, 2)}, v{V_WA+t} offset:{off}")
        return out

    def step_mfmas(s):
        b = s % 2
        M = []

        def acc(p, r):
            return (R(p, r, 4), "0" if s == 0 else R(p, r, 4))
        xf = lambda qb: R('a', A_XF + b * 16 + qb * 4, 4)
        wf = lambda T: R('a', A_WF + b * 32 + T * 4, 4)
        for T in range(2):
            d, c = acc('a', A_CS + 4 * T)
            M.append(mfma(d, wf(T), R('a', A_ONES, 4), c))
        for qb in range(4):
            d, c = acc('v', V_SXX + 4 * qb)
            M.append(mfma(d, xf(qb), xf(qb), c))
            d, c = acc('v', V_SX + 4 * qb)
            M.append(mfma(d, R('a', A_ONES, 4), xf(qb), c))
        order = [(T, qb) for T in range(8) for qb in (range(4) if T % 2 else range(3, -1, -1))]
        if s == 15:
            order = [(T, qb) for qb in range(4) for T in range(8)]
        for T, qb in order:
            d, c = acc('v', V_O + (qb * 8 + T) * 4)
            M.append(mfma(d, wf(T), xf(qb), c))
        return M

    a("WAITVM c0\ns_barrier")
    stamp(a, 1)
    a.emit(step_reads(0))
    ln = ln_stream()
    dq = []
    since = 99
    ln_done_step = None
    arrived = False
    for s in range(16):
        pre = ["s_waitcnt lgkmcnt(0)"]
        arrive = False
        if s % 2 == 1 and s < 15:
            c = (s + 1) // 2
            assert not dq
            tags = f"c{c}"
            if ln_done_step is not None and ln_done_step <= s - 2 and not arrived:
                tags += ",pub"
                arrive = arrived = True
            pre = [f"WAITVM {tags} lgkmcnt(0)", "s_barrier"]
            if c + 2 <= 7:
                dq = chunk_dma(c + 2)
            elif c == 6:
                dq = kv_first()
        if s == 1:
            pre[0] = "WAITVM c1,ln lgkmcnt(0)"
        a.emit(pre)
        if OPT["stamp"]:
            a(f"s_memtime s[40:41]\ns_waitcnt lgkmcnt(0)\nv_writelane_b32 v7, s40, {44+s}")
        M = step_mfmas(s)
        rd = step_reads(s + 1) if s < 15 else []
        if s == 15:
            st = stats_stream()
            special = {8: [f"ds_write_b128 v30, a[{A_CS}:{A_CS+3}]"], 9: [f"ds_write_b128 v30, a[{A_CS+4}:{A_CS+7}] offset:1024"],
                       10: [f"v_add_u32 v{V_DX}, {HK}, v31", f"v_xor_b32 v{V_DX+1}, 8192, v31"],
                       11: [f"v_xor_b32 v{V_DX+2}, 16384, v31", f"v_xor_b32 v{V_DX+3}, 24576, v31"],
                       12: [f"v_add_u32 v{V_DX+1}, {HK}, v{V_DX+1}", f"v_add_u32 v{V_DX+2}, {HK}, v{V_DX+2}"],
                       13: [f"v_add_u32 v{V_DX+3}, {HK}, v{V_DX+3}"],
                       20: ["WAITVM kv0 lgkmcnt(0)", "s_barrier"]}
            cs = [f"ds_read_b128 v[{V_CS+4*T}:{V_CS+4*T+3}], v{V_DX + T//2} offset:{(T%2)*1024}" for T in range(8)]
            kr = [k_read(0, kb, t) for kb in range(2) for t in range(4)]
            for i in range(8):
                special[21 + 2 * i] = (cs + kr)[2 * i:2 * i + 2]
        for g, m in enumerate(M):
            a(m)
            since += 1
            if s == 15:
                if g in special:
                    a.emit(special[g])
                elif g >= 14:
                    a.emit(st.pop(0))
                continue
            if arrive and g == 0:
                a(f"v_mov_b32 v26, 1\nbuffer_atomic_add v26, v{V_T0}, {srd(S_DBG)}, 0 offen")
                continue
            if dq and dq[0][0] == "D" and since >= 4:
                a(dq.pop(0)[1])
                since = 0
                continue
            while dq and dq[0][0] == "S":
                a(dq.pop(0)[1])
            if rd:
                a.emit(rd[:2])
                rd = rd[2:]
            elif ln and s >= 1:
                a.emit(ln.pop(0))
                if not ln:
                    ln_done_step = s
        assert not rd
    assert arrived and not dq
    stamp(a, 2)
    for grp in st:
        a.emit(grp)
    a("s_waitcnt lgkmcnt(0)")
    QK0 = qk_mfmas(first_c="0")
    dq = kv2()

    def fin_pk(qb):
        m = V_SX + 4 * qb
        for i in range(16):
            r = V_O + 32 * qb + 2 * i
            a(f"v_pk_fma_f32 v[{r}:{r+1}], v[{V_CS+2*i}:{V_CS+2*i+1}], v[{m}:{m+1}], v[{r}:{r+1}] op_sel_hi:[1,0,1]")
        for i in range(16):
            r = V_O + 32 * qb + 2 * i
            a(f"v_pk_mul_f32 v[{r}:{r+1}], v[{r}:{r+1}], v[{m+2}:{m+3}] op_sel_hi:[1,0]")

    def fin_cv(qb):
        out = []
        for i in range(16):
            r = V_O + 32 * qb + 2 * i
            out.append(f"v_cvt_pk_bf16_f32 v{r}, v{r}, v{r+1}")
            out.append(f"v_accvgpr_write_b32 a{A_Q + 16*qb + i}, v{r}")
        return out
    for qb in range(4):
        fin_pk(qb)
        cv = fin_cv(qb)
        if qb == 0:
            a.emit(cv)
        else:
            for i in range(8):
                a(QK0[8 * (qb - 1) + i])
                if dq and i % 2 == 0:
                    a(dq.pop(0)[1])
                a.emit(cv[4 * i:4 * i + 4])
    assert not dq

    def tile_max(qb):
        s0, m = V_S + 8 * qb, V_NEGM + 4 * qb
        return [f"v_max3_f32 v{m}, v{s0}, v{s0+1}, v{s0+2}", f"v_max3_f32 v{m}, v{m}, v{s0+3}, v{s0+4}",
                f"v_max3_f32 v{m}, v{m}, v{s0+5}, v{s0+6}", f"v_max_f32 v{m}, v{m}, v{s0+7}"]
    mx = tile_max(0) + tile_max(1) + tile_max(2)
    a.emit(mx[:2])
    mx = mx[2:]
    for i in range(8):
        a(QK0[24 + i])
        a.emit(mx[:2])
        mx = mx[2:]
    for kb in (1, 0):
        for t in range(3, -1, -1):
            a(k_read(1, kb, t))
    a.emit(tile_max(3))
    a.cross_reduce("v_max_f32", [V_NEGM + 4 * qb for qb in range(4)], [V_NEGM + 4 * qb + 1 for qb in range(4)])
    for i in range(32):
        a(f"v_sub_f32 v{V_S+i}, v{V_S+i}, v{V_NEGM + 4*(i//8)}")
    for qb in range(4):
        m = V_NEGM + 4 * qb
        for i in (3, 2, 1, 0):
            a(f"v_sub_f32 v{m+i}, 0, v{m}")
    a("v_lshrrev_b32 v5, 3, v1\nv_lshlrev_b32 v5, 10, v5\nv_and_b32 v6, 7, v1\nv_lshlrev_b32 v26, 1, v4\nv_xor_b32 v6, v6, v26\nv_lshl_add_u32 v5, v6, 4, v5")
    a(f"s_lshl_b32 s3, s{S_QBLK}, 7\nv_add_u32 v{V_DWO}, s3, v5")
    for j in range(1, 4):
        a(f"v_add_u32 v{V_DWO+j}, {8192*j - 1024*j}, v{V_DWO}")
    a(f"v_mov_b32 v{V_H}, 0")
    a("L_sm0:")
    for i in range(0, 32, 4):
        for k in range(4):
            a(sm_exp(i + k))
        a("s_nop 0")
        a(sm_cvt(0, i + 1))
        a(sm_cvt(0, i + 3))
        if i >= 8 * OPT["nsum"]:
            l = V_L + i // 8
            if i % 8 == 0:
                a(f"v_add_f32 v{l}, v{V_T + i % 8}, v{V_T + (i+1) % 8}")
            else:
                a(sm_add(i))
                a(sm_add(i + 1))
            a(sm_add(i + 2))
            a(sm_add(i + 3))
    a(f"s_add_u32 s3, s2, 1\ns_and_b32 s3, s3, 7\ns_lshl_b32 s3, s3, 2\ns_add_u32 s3, s3, s{S_WAVE}\ns_lshl_b32 s{S_KSW}, s3, 17\ns_lshl_b32 s{S_KSO}, s3, 12")
    a("s_waitcnt lgkmcnt(0)")
    stamp(a, 3)
    a.emit(period(0, first=True))
    a("s_branch L_loop_p1")
    a(".p2align 6\nL_loop:")
    for p in range(8):
        if p == 1:
            a("L_loop_p1:")
        a.emit(period(p, hook=(p % 4 == 3)))
        if p == 3:
            a(f"s_cbranch_scc1 L_hookA\nL_retA:")
    a("s_cbranch_scc0 L_loop")
    a(f"s_mov_b32 s{S_RET}, 1\ns_branch L_hook")
    a(f"L_hookA:\ns_mov_b32 s{S_RET}, 0")
    gen_hooks(a)
    a(".p2align 6\nL_last:")
    for p in range(7):
        if p < 2:
            a.emit(period(p))
        else:
            a.emit(period(p, dma="wo", wok=p - 2, kread=(p < 6)))
    for db in range(8):
        a(v_read(7, db, 0))
        a(v_read(7, db, 1))
    M = pv_mfmas(7)
    ns = OPT["nsum"]
    dq = []
    for k in (5, 6, 7):
        dq.append(("S", f"s_add_u32 m0, s{S_W4096}, {WO_PAGES[k]*16384}"))
        dq += [("D", wo_dma(j, k)) for j in range(4)]
        dq += [("S", x) for x in wo_adv(k)]
    a("v_and_b32 v5, 31, v0\nv_lshlrev_b32 v5, 2, v5")
    a(f"buffer_load_dword v{V_H}, v5, {srd(S_DBG)}, 0 offen sc1 @dbg")
    a.emit(M[:ns])
    for db in range(8):
        a(f"s_waitcnt lgkmcnt({14 - 2*db})")
        for i in range(4):
            a(M[ns + db * 4 + i])
            if i % 2 == 0:
                while dq and dq[0][0] == "S":
                    a(dq.pop(0)[1])
            elif dq and dq[0][0] == "D":
                a(dq.pop(0)[1])
    assert not dq
    stamp(a, 4)
    vq = list(range(ns, 4))
    if vq:
        a.cross_reduce("v_add_f32", [V_L + qb for qb in vq], [V_T + qb for qb in vq])
    for qb in range(ns):
        a(f"v_accvgpr_read_b32 v{V_L+qb}, a{A_SUM+4*qb}")
    for qb in range(4):
        a(f"v_rcp_f32 v{V_T+2*qb}, v{V_L+qb}")
    a(f"s_mov_b32 s3, {f32bits(2.0 ** OPT['thr']):#x}")
    for qb in range(4):
        a(f"v_cmp_nlt_f32 s[{92+2*qb}:{93+2*qb}], v{V_L+qb}, s3")
    a("v_lshlrev_b32 v5, 4, v1")
    a("s_or_b64 s[92:93], s[92:93], s[94:95]\ns_or_b64 s[96:97], s[96:97], s[98:99]\ns_or_b64 s[92:93], s[92:93], s[96:97]\ns_or_b32 s92, s92, s93")
    a(f"v_mov_b32 v6, s92\nv_lshlrev_b32 v35, 2, v2\nv_add_u32 v35, {9*16384}, v35\nds_write_b32 v35, v6")
    a(f"s_lshl_b32 s3, s{S_QBLK}, 21\ns_lshl_b32 s42, s{S_WAVE}, 19\ns_add_u32 s3, s3, s42\ns_lshl_b32 s42, s{S_HEAD}, 12\ns_add_u32 s3, s3, s42\ns_add_u32 s3, s3, {WS_O}")
    for qb in range(4):
        for j in range(4):
            r = V_O + (qb * 8 + 2 * j) * 4
            for i in range(4):
                a(f"v_pk_mul_f32 v[{r+2*i}:{r+2*i+1}], v[{r+2*i}:{r+2*i+1}], v[{V_T+2*qb}:{V_T+2*qb+1}] op_sel_hi:[1,0]")
            for i in range(4):
                a(f"v_cvt_pk_bf16_f32 v{r+i}, v{r+2*i}, v{r+2*i+1}")
            a(f"buffer_store_dwordx4 v[{r}:{r+3}], v5, {srd(S_WS)}, s3 offen offset:{j*1024} sc1 @o")
        if qb < 3:
            a("s_add_u32 s3, s3, 131072")
    stamp(a, 5)
    V_WR = 40
    V_OA = 52
    V_FA = 56
    V_ACC = 64
    V_OF = 128
    NST = 8
    a("v_lshrrev_b32 v5, 2, v1\nv_bfe_u32 v6, v1, 3, 2\nv_lshlrev_b32 v6, 5, v6\nv_lshl_add_u32 v5, v5, 7, v6\nv_and_b32 v6, 3, v1\nv_lshl_add_u32 v5, v6, 3, v5")
    a(f"v_lshl_add_u32 v{V_WR}, v2, 12, v5")
    for nb in range(1, 4):
        a(f"v_xor_b32 v{V_WR+nb}, {32*nb}, v{V_WR}")
    for i in range(4, 12):
        a(f"v_add_u32 v{V_WR+i}, 65536, v{V_WR+i-4}")

    def wslot(k):
        return (64 + 16 * k) % 256

    def wo_reads(k):
        pg = WO_PAGES[k]
        out = []
        for nb in range(4):
            for hf in range(2):
                d = wslot(k) + nb * 4 + hf * 2
                out.append(f"ds_read_b64_tr_b16 a[{d}:{d+1}], v{V_WR + (pg//4)*4 + nb} offset:{(pg%4)*16384 + hf*2048}")
        return out

    def wo_issue(k):
        return [f"s_add_u32 m0, s{S_W4096}, {WO_PAGES[k]*16384}", "s_nop 0"] + [wo_dma(j, k) for j in range(4)] + wo_adv(k)
    for k in range(8):
        a(f"WAITVM wo{k}")
        a.emit(wo_reads(k))
        if k:
            a("s_waitcnt lgkmcnt(8)")
            a.emit(wo_issue(k + 7))
    a("s_waitcnt lgkmcnt(0)")
    a.emit(wo_issue(15))
    a("WAITVM o\ns_barrier")
    a(f"v_mov_b32 v5, {9*16384}\nds_read_b128 v[{V_ACC}:{V_ACC+3}], v5")
    a(f"s_waitcnt lgkmcnt(0)\nv_or3_b32 v5, v{V_ACC}, v{V_ACC+1}, v{V_ACC+2}\nv_or_b32 v5, v5, v{V_ACC+3}\ns_nop 0\nv_readfirstlane_b32 s3, v5\ns_nop 3")
    a(f"s_cmp_lg_u32 s{S_PASS}, 0\ns_cselect_b32 s3, 0, s3\ns_cmp_lg_u32 s3, 0\ns_cbranch_scc1 L_fallback")
    a(f"v_mov_b32 v5, 1\nbuffer_store_dword v5, v{V_T0}, {srd(S_WS)}, s59 offen sc1")
    stamp(a, 6)
    a.emit(wo_issue(16))
    a("s_barrier")
    a.emit(wo_issue(17))
    a(f"v_lshrrev_b32 v58, 3, v0\nv_and_b32 v59, 7, v0\nv_lshlrev_b32 v{V_FA}, 10, v58\nv_lshl_add_u32 v{V_FA}, v59, 4, v{V_FA}\nv_add_u32 v{V_FA+1}, 32768, v{V_FA}")
    a(f"s_lshl_b32 s58, s{S_HEAD}, 16\ns_lshl_b32 s3, s{S_QBLK}, 7\ns_add_u32 s58, s58, s3")
    a("v_and_b32 v5, 31, v0\nv_lshlrev_b32 v5, 2, v5")
    a(f"s_add_u32 s43, s{S_QBLK}, 16")
    poll(a, "upd", f"buffer_load_dword v{V_H}, v5, {srd(S_DBG)}, 0 offen sc1",
         [f"v_readlane_b32 s42, v{V_H}, s43", "s_nop 3", "s_cmp_eq_u32 s42, 8"])
    a.vm.pop()
    for t in range(8):
        a(f"v_readlane_b32 s{S_IDX+t}, v{V_H}, {8+t}")
    a(f"s_lshl_b32 s3, s{S_HEAD}, 6\ns_sub_u32 s3, 2047, s3")
    a(f"v_mov_b32 v60, {OOB}\nv_mov_b32 v61, {OOB}\nv_sub_u32 v62, s3, v58\nv_subrev_u32 v63, 32, v62\nv_lshlrev_b32 v5, 4, v59")
    for t in range(8):
        a(f"s_and_b32 s{S_IDX+t}, s{S_IDX+t}, 0x7ff")
        a(f"v_cmp_eq_u32 vcc, s{S_IDX+t}, v62\nv_cmp_eq_u32 s[42:43], s{S_IDX+t}, v63\ns_nop 0\nv_cndmask_b32 v60, v60, v5, vcc\nv_cndmask_b32 v61, v61, v5, s[42:43]\nv_add_u32 v5, 1024, v5")
    a(f"s_lshl_b32 s3, s{S_QBLK}, 7\ns_add_u32 s3, s3, {WS_UPD}")
    V_FX = 8
    a(f"buffer_load_dwordx4 v[8:11], v{V_FA}, {srd(S_X)}, s58 offen @fin\nbuffer_load_dwordx4 v[12:15], v{V_FA+1}, {srd(S_X)}, s58 offen @fin")
    a(f"buffer_load_dwordx4 v[16:19], v{V_FA}, {srd(S_WS)}, s58 offen sc1 @fin\nbuffer_load_dwordx4 v[20:23], v{V_FA+1}, {srd(S_WS)}, s58 offen sc1 @fin")
    a(f"buffer_load_dwordx4 v[36:39], v60, {srd(S_WS)}, s3 offen sc1 @fin\nbuffer_load_dwordx4 v[60:63], v61, {srd(S_WS)}, s3 offen sc1 @fin")
    for k in range(8, 16):
        a(f"WAITVM wo{k}")
        a.emit(wo_reads(k))
        if k > 8:
            a("s_waitcnt lgkmcnt(8)")
            a.emit(wo_issue(k + 9))
    a("s_waitcnt lgkmcnt(0)")
    a.emit(wo_issue(25))
    a(f"s_lshl_b32 s3, s{S_HEAD}, 19\ns_add_u32 s3, s3, {WS_O}\nv_lshlrev_b32 v5, 4, v1\nv_add_u32 v{V_OA}, s3, v5")
    for rb in range(1, 4):
        a(f"v_add_u32 v{V_OA+rb}, {131072*rb}, v{V_OA}")
    stamp(a, 7)
    a(f"s_lshr_b32 s3, s{S_HEAD}, 2\ns_lshl_b32 s3, s3, 2\ns_add_u32 s3, s3, s{S_WAVE}\ns_lshl_b32 s3, s3, 7\ns_add_u32 s3, s3, {WS_FLAG}")
    a(f"v_and_b32 v5, 7, v1\nv_lshlrev_b32 v5, 2, v5\nv_mov_b32 v6, 0")
    poll(a, "flag", f"buffer_load_dword v6, v5, {srd(S_WS)}, s3 offen sc1",
         ["v_cmp_eq_u32 vcc, 1, v6", "s_nop 0", "s_cmp_eq_u32 vcc_lo, -1"])
    a.vm.pop()
    stamp(a, 8)

    def o_issue(k):
        st = k % NST
        out = [f"buffer_load_dwordx4 v[{V_OF+st*16+rb*4}:{V_OF+st*16+rb*4+3}], v{V_OA+rb}, {srd(S_WS)}, s{S_KSO} offen offset:{(k%4)*1024} sc1 @o{k}"
               for rb in range(4)]
        if k % 4 == 3:
            out += [f"s_add_u32 s{S_KSO}, s{S_KSO}, 16384", f"s_and_b32 s{S_KSO}, s{S_KSO}, 0x1ffff"]
        return out
    PF = NST - 1
    for k in range(PF):
        a.emit(o_issue(k))
    for k in range(32):
        st = k % NST
        kr = k + 15 if 1 <= k <= 16 else None
        tags = f"o{k}" + (f",wo{kr}" if kr is not None else "")
        a(f"WAITVM {tags} lgkmcnt(0)")
        fill = {}
        if kr is not None:
            rd = wo_reads(kr)
            for i in range(4):
                fill[1 + 4 * i] = rd[2 * i:2 * i + 2]
        if k + PF < 32:
            oi = o_issue(k + PF)
            for i in range(4):
                fill[4 * i] = [oi[i]]
            fill[14] = oi[4:]
        kw = k + 24 if 2 <= k <= 7 else None
        if kw is not None:
            wi = wo_issue(kw)
            a(wi[0])
            for i in range(4):
                fill[2 + 4 * i] = [wi[2 + i]] + (fill.get(14, []) if i == 3 else [])
            fill[15] = wi[6:]
        g = 0
        for nb in range(4):
            for i in range(4):
                rb = 3 - i if nb & 1 else i
                d = R('v', V_ACC + (rb * 4 + nb) * 4, 4)
                a(mfma(d, R('a', wslot(k) + nb * 4, 4), R('v', V_OF + st * 16 + rb * 4, 4), "0" if k == 0 else d))
                a.emit(fill.get(g, []))
                g += 1
    stamp(a, 9)
    a.srd(S_T, P_OUT, 2097152)
    a("v_and_b32 v5, 7, v3\nv_xor_b32 v5, v5, v4\nv_lshlrev_b32 v5, 4, v5\nv_lshl_add_u32 v5, v3, 8, v5\nv_lshl_add_u32 v40, v2, 12, v5")
    a("v_xor_b32 v41, 64, v40")
    for rb in range(4):
        for nb in range(4):
            r = V_ACC + (rb * 4 + nb) * 4
            a(f"ds_write_b128 v{40 + (nb&1)}, v[{r}:{r+3}] offset:{rb*16384 + (nb>>1)*128}")
    a("v_lshlrev_b32 v5, 1, v59\nv_and_b32 v6, 7, v58\nv_xor_b32 v5, v5, v6\nv_lshlrev_b32 v5, 4, v5\nv_and_b32 v6, 15, v58\nv_lshl_add_u32 v5, v6, 8, v5")
    a("v_lshrrev_b32 v6, 4, v58\nv_lshl_add_u32 v42, v6, 14, v5\nv_xor_b32 v43, 16, v42")
    G0 = 128
    for h in range(2):
        b = G0 + 32 * h
        a.emit(unpack(b, 16 + 4 * h, 4))
        a.emit(unpack(b + 8, 36 if h == 0 else 60, 4))
        a.emit(unpack(b + 16, 8 + 4 * h, 4))
    a("s_waitcnt lgkmcnt(0)\ns_barrier")
    for h in range(2):
        for w in range(4):
            for q in range(2):
                d = V_ACC + (h * 4 + w) * 8 + q * 4
                a(f"ds_read_b128 v[{d}:{d+3}], v{42+q} offset:{h*32768 + w*4096}")
    for h in range(2):
        b = G0 + 32 * h
        for i in range(8):
            a(f"v_add_f32 v{b+i}, v{b+i}, v{b+8+i}")
        for i in range(8):
            a.rbf(b + i)
        sg = [sigmoid(b + 8 + i, b + i) for i in range(8)]
        for k in range(6):
            for i in range(8):
                if not sg[i][k].startswith("s_nop"):
                    a(sg[i][k])
        for i in range(8):
            a(f"v_mul_f32 v{b+i}, v{b+i}, v{b+8+i}")
        for i in range(8):
            a.rbf(b + i)
    for h in range(2):
        b = G0 + 32 * h
        s = V_ACC + 32 * h
        a(f"s_waitcnt lgkmcnt({8 - 8*h})")
        for i in range(8):
            a(f"v_add_f32 v{s+i}, v{s+i}, v{s+8+i}\nv_add_f32 v{s+16+i}, v{s+16+i}, v{s+24+i}")
        for i in range(8):
            a(f"v_add_f32 v{s+i}, v{s+i}, v{s+16+i}")
        for i in range(8):
            a.rbf(s + i)
        for i in range(8):
            a(f"v_mul_f32 v{s+i}, v{s+i}, v{b+i}")
        for i in range(8):
            a.rbf(s + i)
        for i in range(8):
            a(f"v_add_f32 v{s+i}, v{s+i}, v{b+16+i}")
        for i in range(4):
            a(f"v_cvt_pk_bf16_f32 v{s+8+i}, v{s+2*i}, v{s+2*i+1}")
        a(f"buffer_store_dwordx4 v[{s+8}:{s+11}], v{V_FA+h}, {srd(S_T)}, s58 offen")
    if OPT["stamp"]:
        stamp(a, 10)
        a("s_waitcnt vmcnt(0)")
        stamp(a, 11)
        a(f"v_lshlrev_b32 v5, 2, v0\ns_lshl_b32 s3, s2, 10\ns_add_u32 s3, s3, {WS_STAMP}")
        a(f"buffer_store_dword v7, v5, {srd(S_WS)}, s3 offen")
    a("s_branch L_end")
    a("L_fallback:")
    a(f"s_mov_b32 s{S_PASS}, 1\ns_mov_b32 s{S_STEP}, 0\ns_mov_b32 s{S_HM}, {hmask([]):#x}\ns_mov_b32 s{S_OFF}, 0")
    for qb in range(4):
        a(f"v_mov_b32 v{V_NEGM+4*qb}, 0xff800000")
    a("v_and_b32 v5, 3, v1\nv_cmp_eq_u32 vcc, 0, v5\nv_mov_b32 v6, 0x3f803f80\ns_nop 0\nv_cndmask_b32 v5, 0, v6, vcc")
    for i in range(4):
        a(f"v_accvgpr_write_b32 a{A_ONES+i}, v5")
    a("s_waitcnt vmcnt(0) lgkmcnt(0)")
    a("L_fb_loop:")
    a(f"s_barrier\ns_mov_b32 m0, s{S_W4096}\ns_nop 0")
    for j in range(4):
        a(k_dma(j))
    a("s_waitcnt vmcnt(0)\ns_barrier")
    for u in range(2):
        for kb in range(2):
            for t in range(4):
                a(k_read(u, kb, t))
        a("s_waitcnt lgkmcnt(0)")
        a.emit(qk_mfmas(first_c="0"))
        a("s_nop 7")
        for qb in range(4):
            m = V_NEGM + 4 * qb
            for i in range(0, 8, 2):
                a(f"v_max3_f32 v{m}, v{m}, v{V_S+8*qb+i}, v{V_S+8*qb+i+1}")
    a(f"s_add_u32 s{S_OFF}, s{S_OFF}, 16384\ns_cmp_lt_u32 s{S_OFF}, 524288\ns_cbranch_scc1 L_fb_loop")
    a.cross_reduce("v_max_f32", [V_NEGM + 4 * qb for qb in range(4)], [V_NEGM + 4 * qb + 1 for qb in range(4)])
    for qb in range(4):
        m = V_NEGM + 4 * qb
        for i in (3, 2, 1, 0):
            a(f"v_sub_f32 v{m+i}, 0, v{m}")
    a(f"s_mov_b32 s{S_OFF}, 0\ns_barrier")
    flat(a, kv_first())
    flat(a, kv2())
    a("s_waitcnt vmcnt(0)\ns_barrier")
    for kb in range(2):
        for t in range(4):
            a(k_read(0, kb, t))
    a("s_waitcnt lgkmcnt(0)")
    a.emit(qk_mfmas())
    a("s_nop 7")
    for kb in range(2):
        for t in range(4):
            a(k_read(1, kb, t))
    a("s_branch L_sm0")
    a("L_end:\ns_endpgm")
    return f""".amdhsa_kernel {label}
  .amdhsa_next_free_vgpr 512
  .amdhsa_next_free_sgpr 102
  .amdhsa_accum_offset 256
  .amdhsa_group_segment_fixed_size 0
  .amdhsa_kernarg_size 104
  .amdhsa_user_sgpr_count 2
  .amdhsa_user_sgpr_kernarg_segment_ptr 1
  .amdhsa_system_sgpr_workgroup_id_x 1
.end_amdhsa_kernel"""


def build():
    a = Asm()
    hdr = ["; One fused kernel, 256 workgroups (one per CU). Emitted by the author's own generator script (hand-designed schedule).",
           "; @launch grid=(256,1,1) block=(256,1,1) lds=163840"]
    a('.amdgcn_target "amdgcn-amd-amdhsa--gfx950"\n.text')
    d = gen_kernel(a)
    return "\n".join(hdr) + "\n" + "\n".join(a.L) + '\n.section .rodata,"a"\n.p2align 6\n' + d + "\n"


if __name__ == "__main__":
    path = sys.argv[1] if len(sys.argv) > 1 else f"cdna_kernels/{NAME}.s"
    for arg in sys.argv[2:]:
        k, v = arg.split("=")
        OPT[k] = eval(v)
    open(path, "w").write(build())
```

```python
import sys, struct

NAME = "recurrent_scan__mha_block_cached__moe_arch_mod__prompt"

WS_XN = 0
WS_KEY = 2 << 20
WS_FLAG = WS_KEY + 8192
WS_FFLAG = WS_KEY + 12288
WS_UFLAG = WS_KEY + 13312
WS_STAT = WS_KEY + 16384
WS_UPD = WS_KEY + 24576
WS_YP = 3 << 20
WS_O = 8 << 20
WS_STAMP = 32 << 20
WS_SIZE = 268435456
OOB = 0x40000000

OPT = dict(osc=' sc1', stamp=False, nsum=4, thr=64, codewarm=True, wot1=True, wot2=False, early=True, flpos=9, keep=True, kvtouch=True, rot=True, dyn=True, nmix=0, npre=0, ninit=2, tx=True, late_touch=False, gostep=3, goload=2, ststep=11, snake=True)
LOG2E = 1.4426950408889634


def f32bits(x):
    return struct.unpack("<I", struct.pack("<f", x))[0]


def R(p, s, n=1):
    return f"{p}{s}" if n == 1 else f"{p}[{s}:{s+n-1}]"


def is_vmem(line):
    return line.startswith("buffer_") or line.startswith("global_")


class Asm:
    def __init__(self):
        self.L = []
        self.vm = []

    def __call__(self, s):
        for line in s.split("\n"):
            line = line.strip()
            if not line:
                continue
            tag = None
            if "@" in line and not line.startswith("."):
                line, tag = [x.strip() for x in line.split("@")]
            if line.startswith("WAITVM"):
                parts = line.split(None, 2)
                last = max(i for i, t in enumerate(self.vm) if t in parts[1].split(","))
                n = len(self.vm) - 1 - last
                assert n <= 63, n
                line = f"s_waitcnt vmcnt({n})" + (" " + parts[2] if len(parts) > 2 else "")
            if is_vmem(line):
                self.vm.append(tag)
            self.L.append(line if line.endswith(":") or line.startswith(".") else "    " + line)

    def emit(self, lst):
        for x in lst:
            self(x)

    def srd(self, d, base, size, add_lo=None):
        if add_lo is None:
            self(f"s_mov_b32 s{d}, s{base}\ns_mov_b32 s{d+1}, s{base+1}")
        else:
            self(f"s_add_u32 s{d}, s{base}, {add_lo}\ns_addc_u32 s{d+1}, s{base+1}, 0")
        self(f"s_mov_b32 s{d+2}, {size}\ns_mov_b32 s{d+3}, 0x00020000")

    def wave_reduce(self, op, v, t):
        for ctl in ("quad_perm:[1,0,3,2]", "quad_perm:[2,3,0,1]", "row_half_mirror", "row_mirror"):
            self("s_nop 1")
            self(f"{op}_dpp v{v}, v{v}, v{v} {ctl} row_mask:0xf bank_mask:0xf")
        self.cross_reduce(op, [v], [t])

    def cross_reduce(self, op, vs, ts, swaps=("v_permlane16_swap_b32", "v_permlane32_swap_b32")):
        for sw in swaps:
            for v, t in zip(vs, ts):
                self(f"v_mov_b32 v{t}, v{v}")
            if len(vs) < 3:
                self("s_nop 1")
            for v, t in zip(vs, ts):
                self(f"{sw} v{v}, v{t}")
            for v, t in zip(vs, ts):
                self(f"{op} v{v}, v{v}, v{t}")

    def rbf(self, v):
        self.emit(rbf(v))


def rbf(v):
    return [f"v_cvt_pk_bf16_f32 v{v}, v{v}, v{v}", f"v_and_b32 v{v}, 0xffff0000, v{v}"]


def unpack(dst, src, n):
    out = []
    for i in range(n):
        out += [f"v_lshlrev_b32 v{dst+2*i}, 16, v{src+i}", f"v_and_b32 v{dst+2*i+1}, 0xffff0000, v{src+i}"]
    return out


def sigmoid(dst, src):
    return [f"v_mul_f32 v{dst}, {f32bits(-LOG2E):#x}, v{src}", f"v_exp_f32 v{dst}, v{dst}", "s_nop 0",
            f"v_add_f32 v{dst}, 1.0, v{dst}", f"v_rcp_f32 v{dst}, v{dst}", "s_nop 0"]


def mfma(d, A, B, c):
    return f"v_mfma_f32_16x16x32_bf16 {d}, {A}, {B}, {c}"


V_KA = 8
V_VA = 12
V_DK = 20
V_DV = 24
V_H = 26
V_T0 = 27
V_CW = 28
V_DWO = 30
V_L = 36
V_T = 40
V_NEGM = 48
V_S = 64
V_P = 96
V_O = 128
V_SX = 48
V_DX = 64
V_DW = 72
V_XA = 76
V_WA = 80
V_CS = 96
A_Q = 0
A_K = 64
A_V = 96
A_SUM = 128
A_CS = 128
A_HK = 144
A_WF = 144
A_XF = 208
A_ONES = 240
S_X, S_WQ, S_K, S_V, S_WS = 8, 12, 16, 20, 24
S_WAVE, S_HEAD, S_QBLK, S_W4096, S_OFF = 28, 29, 30, 31, 32
S_STEP, S_XOFF, S_WOFF, S_W8192, S_PASS, S_HM, S_RET = 33, 34, 35, 36, 37, 38, 39
S_DBG, S_T, S_WO = 44, 48, 52
S_KSW, S_KSO = 34, 35
S_U, S_RDY, S_KSE = 4, 5, 6
S_PK, S_FL = 63, 7
S_HOFF = 64
P_X, P_K, P_V, P_WQ, P_WO, P_WR, P_GATE, P_UP, P_DOWN, P_OUT, P_DBG, P_WS = 64, 66, 68, 70, 72, 76, 78, 80, 82, 84, 86, 88
S_IDX = 90

XBASE = [32768, 131072, 0]
WBASE = [98304, 114688, 65536]
QSCALE = (128 ** -0.5) * LOG2E
HK = 131072
WO_PAGES = [8, 9, 8, 9, 8, 9, 0, 4, 1, 5, 2, 8, 3, 6, 9, 7]
for _j in range(16, 32):
    WO_PAGES.append(WO_PAGES[_j - 10])
_AS = [9, 10, 11, 12, 13, 14, 15, 4, 5, 6, 7, 8, 0, 1, 2, 3]
WO_DST = [('a', 16 * x) for x in _AS] + [('v', 128), ('v', 144), ('v', 160), ('v', 8)] + [('a', 16 * x) for x in _AS[:12]]
WO_K = list(range(4, 20)) + [0, 1, 2, 3] + list(range(20, 32))
WO_J = {k: j for j, k in enumerate(WO_K)}
V_WR = 40
V_WE = 36


def srd(s):
    return f"s[{s}:{s+3}]"


def k_dma(j):
    return f"buffer_load_dwordx4 v{V_DK+j}, {srd(S_K)}, s{S_OFF} offen offset:{j*1024} lds"


def v_dma(j):
    return f"buffer_load_dwordx4 v{V_DV+(j&1)}, {srd(S_V)}, s{S_OFF} offen offset:{j*1024} lds"


def wo_dma(j, k, so=S_KSW):
    return f"buffer_load_dwordx4 v{V_DWO+j}, {srd(S_WO)}, s{so} offen offset:{j*1024} lds @wo{k}"


def wo_off(k, so=S_KSW):
    k = WO_K[k]
    return f"s_add_u32 s{so}, s{S_HOFF + k//4}, {(k % 4) * 32768}"


def wo_m0(k):
    return f"s_add_u32 m0, s{S_W4096}, {WO_PAGES[k]*16384}"


def wo_issue(k):
    return [wo_m0(k), wo_off(k)] + [wo_dma(j, k) for j in range(4)]


def wo_reads(k, early=False):
    pg = WO_PAGES[k]
    out = []
    for nb in range(4):
        for hf in range(2):
            f, d = WO_DST[k]
            d += nb * 4 + hf * 2
            reg = V_WE + nb if early else V_WR + (pg // 4) * 4 + nb
            out.append(f"ds_read_b64_tr_b16 {f}[{d}:{d+1}], v{reg} offset:{(pg%4)*16384 + hf*2048}")
    return out


def k_read(u, kb, t):
    off = ((u >> 1) & 3) * 16384 + ((u & 1) * 32 + kb * 16) * 256
    return f"ds_read_b128 {R('a', A_K + (kb*4+t)*4, 4)}, v{V_KA+t} offset:{off}"


def v_read(u, db, hf):
    off = ((u >> 1) & 3) * 16384 + ((u & 1) * 32 + hf * 16) * 256
    return f"ds_read_b64_tr_b16 {R('a', A_V + db*4 + hf*2, 2)}, v{V_VA+db} offset:{off}"


def qk_order():
    out = []
    for qb in range(4):
        for i in range(2):
            kb = i ^ (qb & 1) if OPT["snake"] else i
            ts = range(4) if (i == 0 or not OPT["snake"]) else range(3, -1, -1)
            out += [(qb, kb, t, n == 0) for n, t in enumerate(ts)]
    return out


def exp_order():
    out = []
    for qb, kb, t, first in qk_order():
        if first:
            out += [4 * (2 * qb + kb) + i for i in range(4)]
    return out


def qk_mfmas(first_c=None):
    out = []
    for qb, kb, t, first in qk_order():
        d = R('v', V_S + 4 * (2 * qb + kb), 4)
        c = (first_c or R('v', V_NEGM + 4 * qb, 4)) if first else d
        out.append(mfma(d, R('a', A_K + (kb * 4 + t) * 4, 4), R('a', A_Q + (qb * 4 + t) * 4, 4), c))
    return out


def pv_mfmas(u, first=False):
    pb = V_P + (u & 1) * 16
    out = []
    for qb in range(OPT["nsum"] - 1, -1, -1):
        s = R('a', A_SUM + 4 * qb, 4)
        out.append(mfma(s, R('a', A_ONES, 4), R('v', pb + 4 * qb, 4), "0" if first else s))
    for db in range(8):
        for i in range(4):
            qb = 3 - i if (OPT["snake"] and db & 1) else i
            o = R('v', V_O + (qb * 8 + db) * 4, 4)
            out.append(mfma(o, R('a', A_V + db * 4, 4), R('v', pb + 4 * qb, 4), "0" if first else o))
    return out


def sm_exp(n):
    return f"v_exp_f32 v{V_T + n % 8}, v{V_S + exp_order()[n]}"


def sm_cvt(u, n):
    return f"v_cvt_pk_bf16_f32 v{V_P + (u & 1) * 16 + exp_order()[n] // 2}, v{V_T + (n-1) % 8}, v{V_T + n % 8}"


def sm_add(n):
    l = V_L + n // 8
    return f"v_add_f32 v{l}, v{l}, v{V_T + n % 8}"


def period(p, first=False, hook=False, wok=None, kread=True, ek=None, er=None, last=False, touch=(), keep=False, prog=False):
    M = qk_mfmas() + pv_mfmas(p, first)
    n = len(M)
    gaps = [None] * n
    for i in range(8):
        gaps[i] = ("D", [v_read(p, i, 0), v_read(p, i, 1)])
    even = (p % 2 == 0)
    fixed = {}
    if even:
        fixed[32] = ["s_barrier"]
    step = 6 if ek is None else 4
    d0 = 36 if ek is None else 34
    d1 = d0 + 3 * step
    tag = f" @kv{28 + (p + 1) // 2 + (3 if even else 2)}" if last else ""
    for j in range(4):
        fixed[d0 + step * j] = [wo_dma(j, wok) if wok is not None else (k_dma if even else v_dma)(j) + tag]
    e0 = d1 + 4
    if ek is not None:
        for j in range(4):
            fixed[e0 + 4 * j] = [wo_dma(j, ek, S_KSE)]
    if er is not None:
        rd = wo_reads(er, early=True)
        for i in range(4):
            fixed[13 + 4 * i] = rd[2 * i:2 * i + 2]
    for i, t in enumerate(touch):
        fixed[13 + 8 * i] = [t]
    if keep:
        if OPT["keep"]:
            fixed[33] = [f"global_load_dword v6, v[{V_CW}:{V_CW+1}], off sc1"]
        if OPT["dyn"]:
            fixed[35] = [f"buffer_load_dword v34, v35, {srd(S_WS)}, s{S_FL} offen offset:32 sc1"]
    if prog:
        fixed[33] = ["s_and_b32 s98, s98, 0xffffff", f"s_add_u32 s98, s98, s{S_PK}", "v_mov_b32 v5, s98"]
        fixed[35] = [f"buffer_store_dword v5, v{V_T0}, {srd(S_WS)}, s59 offen offset:32 sc1"]
    A0 = 8 * OPT["nsum"]
    kq = [k_read(p + 2, kb, t) for kb in range(2) for t in range(4)] if kread else []
    ne = 0
    q = []
    LAG = 4
    for g in range(8, n):
        if g in fixed:
            gaps[g] = ("F", fixed[g])
            continue
        oldest = min([x[1] for x in q], default=ne)
        if ne % 2 == 1:
            oldest = min(oldest, ne - 1)
        can_e = ne < 32 and g >= 4 * (ne // 4) + 3 + LAG and (ne - oldest) < 8
        k_ok = bool(kq) and g > 32 and g <= n - 6
        want_x = len(q) + (1 if k_ok else 0) >= 2
        if k_ok and 2 * len([x for x in range(g, n - 5) if x not in fixed]) <= len(kq) + 1:
            gaps[g] = ("D", kq[:2])
            kq = kq[2:]
        elif can_e and not want_x:
            gaps[g] = ("E", [sm_exp(ne)])
            if ne >= A0:
                q.append((sm_add(ne), ne))
            if ne % 2 == 1:
                q.append((sm_cvt(p + 1, ne), ne - 1))
            ne += 1
        else:
            items = []
            kind = "V"
            if k_ok:
                items.append(kq.pop(0))
                kind = "D"
            while q and len(items) < 2:
                items.append(q.pop(0)[0])
            gaps[g] = (kind, items)
    assert ne == 32 and not q and not kq, (p, ne, q, kq)
    slot = (p // 2 + 3) & 3 if even else ((p + 1) // 2 + 2) & 3
    page = slot + (0 if even else 4)
    w0 = "s_waitcnt lgkmcnt(0)"
    if even:
        w0 = "s_waitcnt vmcnt(8) lgkmcnt(0)"
        if last:
            w0 = f"WAITVM kv{29 + p // 2} lgkmcnt(0)" if p < 6 else "s_waitcnt lgkmcnt(0)"
    salu = [(w0, 27, 31),
            (f"s_add_u32 m0, s{S_W4096}, {page*16384}", 8, d0 - 1),
            ("s_waitcnt lgkmcnt(0)", n - 3, n - 1)]
    if hook:
        salu.append((f"s_add_u32 s{S_HM}, s{S_HM}, s{S_HM}", n - 5, n - 1))
    if wok is not None:
        assert page == WO_PAGES[wok]
        salu.append((wo_off(wok), 8, d0 - 1))
    elif not even:
        salu.append((f"s_add_u32 s{S_OFF}, s{S_OFF}, 16384", d1 + 1, n - 6))
    if ek is not None:
        salu.append((wo_m0(ek), d1 + 1, e0 - 1))
        salu.append((wo_off(ek, S_KSE), 8, d0 - 1))
    if er is not None:
        salu.append((f"WAITVM wo{er}", 8, 12))
    if prog:
        salu.append(("s_memrealtime s[98:99]", 8, 14))
        salu.append((f"s_sub_u32 s{S_PK}, s{S_PK}, 0x1000000", 15, 22))
    used = set()
    pre = {}
    for text, lo, hi in salu:
        for g in range(hi, lo - 1, -1):
            if g not in used and gaps[g][0] in ("E", "V"):
                used.add(g)
                pre[g] = text
                break
        else:
            raise RuntimeError(f"no SALU slot for {text} in period {p}")
    out = []
    for g in range(n):
        out.append(M[g])
        if g in pre:
            out.append(pre[g])
        out += gaps[g][1]
    return out


def stamp(a, k):
    if OPT["stamp"] >= 2 or (OPT["stamp"] == 1 and k in (0, 11)):
        a(f"s_memrealtime s[40:41]\ns_waitcnt lgkmcnt(0)\nv_writelane_b32 v7, s40, {k}")
        a(f"s_memtime s[40:41]\ns_waitcnt lgkmcnt(0)\nv_writelane_b32 v7, s40, {k+16}")


def ln_stream():
    WR = 112

    def row(raw, X, acc, t, m, key, n):
        o = []

        def red(v):
            r = [f"v_add_f32_dpp v{v}, v{v}, v{v} {c} row_mask:0xf bank_mask:0xf"
                 for c in ("quad_perm:[1,0,3,2]", "quad_perm:[2,3,0,1]", "row_half_mirror", "row_mirror")]
            for sw in ("v_permlane16_swap_b32", "v_permlane32_swap_b32"):
                r += [f"v_mov_b32 v{t}, v{v}", f"{sw} v{v}, v{t}", f"v_add_f32 v{v}, v{v}, v{t}"]
            return r
        o += unpack(X, raw, 4)
        o += [f"v_add_f32 v{m}, v{X}, v{X+1}"] + [f"v_add_f32 v{m}, v{m}, v{X+i}" for i in range(2, 8)]
        o += red(m)
        o += [f"v_mul_f32 v{m}, {f32bits(1/512):#x}, v{m}"]
        for i in range(8):
            o += [f"v_sub_f32 v{t}, v{X+i}, v{m}", f"v_mul_f32 v{acc}, v{t}, v{t}" if i == 0 else f"v_fmac_f32 v{acc}, v{t}, v{t}"]
        o += red(acc)
        o += [f"v_mul_f32 v{acc}, {f32bits(1/512):#x}, v{acc}"] + rbf(m) + rbf(acc)
        o += [f"v_add_f32 v{acc}, {f32bits(1e-5):#x}, v{acc}"] + rbf(acc) + [f"v_sqrt_f32 v{acc}, v{acc}"] + rbf(acc)
        o += [f"v_lshrrev_b32 v{t}, 16, v{m}", f"v_or_b32 v{36+n}, v{t}, v{acc}", "STAT"]
        o += [f"v_rcp_f32 v{acc}, v{acc}"]
        o += [f"v_sub_f32 v{X+i}, v{X+i}, v{m}" for i in range(8)]
        o += [f"v_cvt_pk_bf16_f32 v{raw+i}, v{X+2*i}, v{X+2*i+1}" for i in range(4)]
        o += unpack(X, raw, 4)
        o += [f"v_mul_f32 v{X+i}, v{X+i}, v{acc}" for i in range(8)]
        o += [f"v_cvt_pk_bf16_f32 v{raw+i}, v{X+2*i}, v{X+2*i+1}" for i in range(4)]
        o += [f"buffer_store_dwordx4 v[{raw}:{raw+3}], v29, {srd(S_WS)}, s60 offen offset:{1024*n} sc1 @pub"]
        o += unpack(X, raw, 4)
        o += [f"v_mul_f32 v{acc}, v{X}, v{WR}"] + [f"v_fmac_f32 v{acc}, v{X+i}, v{WR+i}" for i in range(1, 8)]
        o += red(acc)
        o += [f"v_cvt_pk_bf16_f32 v{acc}, v{acc}, v{acc}", f"v_ashrrev_i32 v{t}, 31, v{acc}", f"v_or_b32 v{t}, 0x80000000, v{t}",
              f"v_xor_b32 v{acc}, v{acc}, v{t}", f"v_and_b32 v{acc}, 0xffff0000, v{acc}", f"v_or_b32 v{key}, s{62+n}, v{acc}"]
        return o
    A = row(84, 96, 120, 122, 124, 126, 0)
    B = row(88, 104, 121, 123, 125, 127, 1)
    w = unpack(WR, 92, 4)
    G = [[x, y] for x, y in zip(A, B)]
    i0 = A.index("STAT")
    return G[:i0], [w[i:i + 2] for i in range(0, 8, 2)] + G[i0 + 1:]


def stats_stream():
    ops = []
    for qb in range(4):
        m = V_SX + 4 * qb
        ops.append([f"v_lshlrev_b32 v{m}, 16, v{m+1}", f"v_and_b32 v{m+2}, 0xffff0000, v{m+1}", f"v_rcp_f32 v{m+2}, v{m+2}",
                    f"v_xor_b32 v{m}, 0x80000000, v{m}", f"v_mul_f32 v{m+2}, {f32bits(QSCALE):#x}, v{m+2}"])
    G = []
    for k in range(len(ops[0])):
        G += [[ops[0][k], ops[1][k]], [ops[2][k], ops[3][k]]]
    return G


def poll(a, name, load, check, ret=None):
    n0 = len(a.vm)
    ok = ret or f"L_{name}_ok"
    a(f"s_mov_b32 s57, 0\nL_{name}_chk:")
    a.emit(check)
    a(f"s_cbranch_scc1 {ok}")
    a(f"s_add_u32 s57, s57, 1\ns_cmp_gt_u32 s57, 0x40000\ns_cbranch_scc1 {ok}")
    a("s_sleep 1")
    a(load)
    a("s_waitcnt vmcnt(0)")
    a(f"s_branch L_{name}_chk")
    if ret is None:
        a(f"{ok}:")
    del a.vm[n0:]


KEYS_ADDR = "v_and_b32 v5, 7, v0\nv_lshlrev_b32 v5, 2, v5"
KEYS_LOAD = f"buffer_load_dword v{V_H}, v5, {srd(S_DBG)}, 0 offen offset:32 sc1"
KEYS_CHK = [f"v_cmp_ne_u32 vcc, 0, v{V_H}", "s_nop 0", "s_cmp_eq_u32 vcc_lo, -1"]


def ffn_weight_dma(a):
    a("v_lshrrev_b32 v5, 1, v1\nv_mul_u32_u24 v5, 3584, v5\nv_and_b32 v6, 1, v1\nv_lshl_add_u32 v5, v6, 4, v5")
    a(f"s_lshl_b32 s42, s{S_WAVE}, 2\ns_add_u32 s42, s42, s{S_STEP}\ns_sub_u32 s42, s42, 16\ns_lshl_b32 s3, s42, 10\ns_mul_i32 s42, s42, {32*3584}\ns_lshl_b32 s43, s{S_U}, 5\ns_add_u32 s42, s42, s43")
    for ptr, base in ((P_GATE, HK), (P_UP, HK + 16384)):
        a(f"s_add_u32 m0, s3, {base}")
        a.srd(S_T, ptr, 512 * 1792 * 2)
        a(f"buffer_load_dwordx4 v5, {srd(S_T)}, s42 offen lds")
    a(f"s_add_u32 s{S_STEP}, s{S_STEP}, 1")


def gen_hooks(a):
    S = V_S
    AW = A_HK + 16
    a("L_hook:")
    if OPT["stamp"] == 2:
        a("s_memtime s[100:101]")
    a(f"s_cmp_lt_u32 s{S_STEP}, 20\ns_cbranch_scc1 L_hk_m\ns_cmp_ge_u32 s{S_STEP}, 30\ns_cbranch_scc1 L_hk_r")
    for st in (21, 22, 23, 24):
        a(f"s_cmp_eq_u32 s{S_STEP}, {st}\ns_cbranch_scc1 L_h{st}")

    def done(nxt):
        a(f"s_mov_b32 s{S_STEP}, {nxt}\ns_branch L_hook_ret")
    a("L_h20:")
    a(KEYS_ADDR)
    a(KEYS_LOAD)
    a("v_lshrrev_b32 v5, 2, v3\nv_lshl_add_u32 v5, v4, 3, v5\nv_lshlrev_b32 v5, 5, v5\nv_and_b32 v6, 3, v3\nv_lshl_add_u32 v5, v6, 3, v5")
    a(f"v_lshl_add_u32 v5, v2, 12, v5\nv_add_u32 v5, {HK}, v5")
    for m in range(2):
        for ks in range(4):
            for hf in range(2):
                d = AW + m * 16 + ks * 4 + hf * 2
                a(f"ds_read_b64_tr_b16 a[{d}:{d+1}], v5 offset:{m*16384 + ks*1024 + hf*128}")
    done(21)
    a("L_h21:")
    a(KEYS_ADDR)
    poll(a, "h21", KEYS_LOAD, KEYS_CHK)
    a(f"v_and_b32 v6, 0x7ff, v{V_H}\nv_sub_u32 v6, 2047, v6\nv_lshlrev_b32 v6, 10, v6\nv_lshl_add_u32 v6, v4, 4, v6\ns_lshl_b32 s42, s{S_WAVE}, 8")
    assert WS_XN == 0
    for ks in range(4):
        a(f"buffer_load_dwordx4 a[{A_HK+4*ks}:{A_HK+4*ks+3}], v6, {srd(S_WS)}, s42 offen offset:{ks*64} sc1")
    done(22)
    a("L_h22:")
    for m in range(2):
        for ks in range(4):
            d = R('v', V_T + 4 * m, 4)
            a(mfma(d, R('a', AW + m * 16 + ks * 4, 4), R('a', A_HK + 4 * ks, 4), "0" if ks == 0 else d))
    a.srd(S_T, P_DOWN, 1792 * 512 * 2)
    a(f"v_lshlrev_b32 v6, 4, v1\ns_lshl_b32 s42, s{S_U}, 14\ns_add_u32 m0, s{S_W4096}, {HK + 16384}\ns_add_u32 s42, s42, s{S_W4096}")
    a(f"v_lshl_add_u32 v5, v2, 12, v6\nv_add_u32 v5, {HK}, v5")
    a(f"ds_write_b128 v5, v[{V_T}:{V_T+3}]\nds_write_b128 v5, v[{V_T+4}:{V_T+7}] offset:1024")
    for j in range(4):
        a(f"buffer_load_dwordx4 v6, {srd(S_T)}, s42 offen offset:{j*1024} lds")
    done(23)
    a("L_h23:")
    a(f"v_lshlrev_b32 v5, 4, v1\nv_add_u32 v5, {HK}, v5")
    for w in range(4):
        for m in range(2):
            d = S + (w * 2 + m) * 4
            a(f"ds_read_b128 v[{d}:{d+3}], v5 offset:{w*4096 + m*1024}")
    a("v_lshrrev_b32 v5, 2, v1\nv_lshlrev_b32 v5, 10, v5\nv_and_b32 v6, 3, v1\nv_lshl_add_u32 v5, v6, 3, v5")
    a(f"v_lshl_add_u32 v5, v2, 8, v5\nv_add_u32 v5, {HK + 16384}, v5")
    for i in range(8):
        a(f"ds_read_b64_tr_b16 a[{A_HK+2*i}:{A_HK+2*i+1}], v5 offset:{i*32}")
    a("v_and_b32 v5, 7, v1\nv_lshlrev_b32 v5, 11, v5\nv_lshl_add_u32 v5, v4, 4, v5\nv_lshl_add_u32 v5, v2, 9, v5\nv_bfe_u32 v6, v1, 3, 1\nv_lshl_add_u32 v5, v6, 6, v5")
    a(f"v_cmp_eq_u32 vcc, 1, v6\ns_lshl_b32 s42, s{S_U}, 14\ns_add_u32 s42, s42, {WS_YP}\ns_waitcnt lgkmcnt(8)")
    for i in range(0, 8, 2):
        a(f"v_pk_add_f32 v[{S+i}:{S+i+1}], v[{S+i}:{S+i+1}], v[{S+8+i}:{S+9+i}]\nv_pk_add_f32 v[{S+16+i}:{S+17+i}], v[{S+16+i}:{S+17+i}], v[{S+24+i}:{S+25+i}]")
    for i in range(0, 8, 2):
        a(f"v_pk_add_f32 v[{S+i}:{S+i+1}], v[{S+i}:{S+i+1}], v[{S+16+i}:{S+17+i}]")
    for i in range(4):
        a(f"v_cvt_pk_bf16_f32 v{S+8+i}, v{S+2*i}, v{S+2*i+1}")
    a.emit(unpack(S, S + 8, 4))
    sg = [sigmoid(S + 8 + i, S + i) for i in range(4)]
    for k in range(6):
        for i in range(4):
            if not sg[i][k].startswith("s_nop"):
                a(sg[i][k])
    for i in range(4):
        a(f"v_mul_f32 v{S+i}, v{S+i}, v{S+8+i}")
    a(f"v_cvt_pk_bf16_f32 v{S+8}, v{S}, v{S+1}\nv_cvt_pk_bf16_f32 v{S+9}, v{S+2}, v{S+3}")
    a.emit(unpack(S, S + 8, 2))
    for i in range(4):
        a(f"v_mul_f32 v{S+i}, v{S+i}, v{S+4+i}")
    a(f"v_cvt_pk_bf16_f32 v{V_T}, v{S}, v{S+1}\nv_cvt_pk_bf16_f32 v{V_T+1}, v{S+2}, v{S+3}\ns_waitcnt lgkmcnt(0)\ns_nop 0")
    for i in range(8):
        a(f"v_mfma_f32_16x16x16_bf16 v[{S+4*i}:{S+4*i+3}], a[{A_HK+2*i}:{A_HK+2*i+1}], v[{V_T}:{V_T+1}], 0")
    a("s_nop 2")
    for i in range(0, 8, 2):
        for r in range(4):
            a(f"v_cndmask_b32 v{S+4*i+r}, v{S+4*i+r}, v{S+4*i+4+r}, vcc")
        a(f"buffer_store_dwordx4 v[{S+4*i}:{S+4*i+3}], v5, {srd(S_WS)}, s42 offen offset:{i*64} sc1")
    done(24)
    a("L_h24:")
    a(f"s_lshl_b32 s42, s{S_U}, 2\ns_add_u32 s42, s42, {WS_FFLAG}\nv_mov_b32 v5, 1\nbuffer_store_dword v5, v{V_T0}, {srd(S_WS)}, s42 offen sc1")
    done(0)
    a("L_hk_r:")
    for st in (31, 32, 33, 34):
        a(f"s_cmp_eq_u32 s{S_STEP}, {st}\ns_cbranch_scc1 L_h{st}")
    ff_addr = f"v_min_u32 v5, 27, v1\nv_lshlrev_b32 v5, 2, v5\ns_mul_i32 s43, s{S_WAVE}, 112\ns_add_u32 s43, s43, {WS_FFLAG}"
    ff_load = f"buffer_load_dword v{V_H}, v5, {srd(S_WS)}, s43 offen sc1"
    a("L_h30:")
    a(ff_addr)
    a(ff_load)
    done(31)
    a("L_h31:")
    a(ff_addr)
    poll(a, "h31", ff_load, [f"v_cmp_eq_u32 vcc, 1, v{V_H}", "s_nop 0", "s_cmp_eq_u32 vcc_lo, -1"])
    a(KEYS_ADDR)
    a(KEYS_LOAD)
    a(f"v_lshrrev_b32 v5, 4, v0\nv_mul_u32_u24 v5, {7*16384}, v5\nv_lshl_add_u32 v5, v3, 4, v5")
    a(f"s_lshl_b32 s42, s{S_U}, 8\ns_add_u32 s42, s42, {WS_YP}")
    for i in range(7):
        if i:
            a("s_add_u32 s42, s42, 16384")
        a(f"buffer_load_dwordx4 a[{A_HK+4*i}:{A_HK+4*i+3}], v5, {srd(S_WS)}, s42 offen sc1")
    done(32)
    a("L_h32:")
    for i in range(28):
        a(f"v_accvgpr_read_b32 v{S+i}, a{A_HK+i}")
    for i in range(1, 7):
        for r in (0, 2):
            a(f"v_pk_add_f32 v[{S+r}:{S+r+1}], v[{S+r}:{S+r+1}], v[{S+4*i+r}:{S+4*i+r+1}]")
    a.cross_reduce("v_add_f32", [S + r for r in range(4)], [S + 4 + r for r in range(4)])
    a(f"v_lshlrev_b32 v5, 4, v0\nv_add_u32 v5, {HK}, v5\nds_write_b128 v5, v[{S}:{S+3}]")
    done(33)
    a("L_h33:")
    a(f"v_lshlrev_b32 v5, 4, v3\nv_add_u32 v5, {HK}, v5")
    for w in range(4):
        a(f"ds_read_b128 v[{S+4*w}:{S+4*w+3}], v5 offset:{w*1024}")
    a(f"s_lshr_b32 s43, s{S_U}, 3\nv_readlane_b32 s43, v{V_H}, s43\ns_lshl_b32 s42, s{S_U}, 7\ns_add_u32 s42, s42, {WS_UPD}")
    a(f"v_mov_b32 v6, s43\nv_ashrrev_i32 v{S+20}, 31, v6\nv_not_b32 v{S+20}, v{S+20}\nv_or_b32 v{S+20}, 0x80000000, v{S+20}\nv_xor_b32 v6, v6, v{S+20}\nv_and_b32 v6, 0xffff0000, v6")
    a.emit(sigmoid(S + 20, 6))
    a.rbf(S + 20)
    a(f"v_cmp_gt_u32 vcc, 16, v0\nv_lshlrev_b32 v5, 3, v0\nv_mov_b32 v6, {OOB}\nv_cndmask_b32 v5, v6, v5, vcc")
    a("s_waitcnt lgkmcnt(0)")
    for r in range(4):
        a(f"v_add_f32 v{S+r}, v{S+r}, v{S+4+r}\nv_add_f32 v{S+8+r}, v{S+8+r}, v{S+12+r}\nv_add_f32 v{S+r}, v{S+r}, v{S+8+r}")
        a.rbf(S + r)
        a(f"v_mul_f32 v{S+r}, v{S+r}, v{S+20}")
    a(f"v_cvt_pk_bf16_f32 v{S+4}, v{S}, v{S+1}\nv_cvt_pk_bf16_f32 v{S+5}, v{S+2}, v{S+3}")
    a(f"buffer_store_dwordx2 v[{S+4}:{S+5}], v5, {srd(S_WS)}, s42 offen sc1")
    done(34)
    a("L_h34:")
    a(f"s_and_b32 s42, s{S_U}, 7\ns_lshl_b32 s42, s42, 7\ns_lshr_b32 s43, s{S_U}, 3\ns_lshl_b32 s43, s43, 2\ns_add_u32 s42, s42, s43\ns_add_u32 s42, s42, {WS_UFLAG}")
    a(f"v_mov_b32 v5, 1\nbuffer_store_dword v5, v{V_T0}, {srd(S_WS)}, s42 offen sc1")
    done(0)
    a("L_hk_m:")
    a(f"s_cmp_eq_u32 s{S_STEP}, 0\ns_cbranch_scc1 L_hook_ret\ns_cmp_lt_u32 s{S_STEP}, 16\ns_cbranch_scc1 L_hk_m2")
    ffn_weight_dma(a)
    a(f"s_branch L_hook_ret\nL_hk_m2:\ns_cmp_eq_u32 s{S_STEP}, 11\ns_cbranch_scc1 L_h11")
    kl = (f"buffer_load_dwordx4 a[{A_HK}:{A_HK+3}], v5, {srd(S_WS)}, s42 offen sc1\n"
          f"buffer_load_dwordx4 a[{A_HK+4}:{A_HK+7}], v5, {srd(S_WS)}, s42 offen offset:16 sc1")
    a(f"L_h10:\nv_lshlrev_b32 v5, 5, v0\ns_mov_b32 s42, {WS_KEY}")
    a(kl)
    done(11)
    a(f"L_h11:\nv_lshlrev_b32 v5, 5, v0\ns_mov_b32 s42, {WS_KEY}")
    m = S + 8
    poll(a, "h11", kl, [f"v_accvgpr_read_b32 v{S+i}, a{A_HK+i}" for i in range(8)] +
         [f"v_min3_u32 v{m}, v{S}, v{S+1}, v{S+2}", f"v_min3_u32 v{m}, v{m}, v{S+3}, v{S+4}", f"v_min3_u32 v{m}, v{m}, v{S+5}, v{S+6}",
          f"v_min_u32 v{m}, v{m}, v{S+7}", f"v_cmp_ne_u32 vcc, 0, v{m}", "s_nop 0", "s_cmp_eq_u64 vcc, -1"])
    a(f"v_mov_b32 v{S+10}, 0")
    for k in range(8):
        a(f"v_max3_u32 v{m}, v{S}, v{S+1}, v{S+2}\nv_max3_u32 v{m}, v{m}, v{S+3}, v{S+4}\nv_max3_u32 v{m}, v{m}, v{S+5}, v{S+6}\nv_max_u32 v{m}, v{m}, v{S+7}")
        a.wave_reduce("v_max_u32", m, S + 9)
        if k < 7:
            for i in range(0, 8, 4):
                for j in range(4):
                    a(f"v_cmp_ne_u32 s[{92+2*j}:{93+2*j}], v{S+i+j}, v{m}")
                for j in range(4):
                    a(f"v_cndmask_b32 v{S+i+j}, 0, v{S+i+j}, s[{92+2*j}:{93+2*j}]")
        a(f"v_cmp_eq_u32 vcc, {k}, v1\ns_nop 1\nv_cndmask_b32 v{S+10}, v{S+10}, v{m}, vcc")
    a(f"v_lshlrev_b32 v5, 2, v0\nv_add_u32 v5, {HK}, v5\nds_write_b32 v5, v{S+10}\ns_waitcnt lgkmcnt(0)\ns_barrier")
    a(f"v_bfe_u32 v5, v1, 3, 2\nv_lshlrev_b32 v5, 8, v5\nv_and_b32 v6, 7, v1\nv_lshl_add_u32 v5, v6, 2, v5\nv_add_u32 v5, {HK}, v5")
    a(f"ds_read_b32 v{S}, v5\nv_mov_b32 v{S+1}, 0\ns_waitcnt lgkmcnt(0)")
    for j in range(0, 32, 4):
        for i in range(4):
            a(f"v_readlane_b32 s{40+i}, v{S}, {j+i}")
        for i in range(4):
            a(f"v_cmp_gt_u32 s[{92+2*i}:{93+2*i}], s{40+i}, v{S}")
        for i in range(4):
            a(f"v_addc_co_u32 v{S+1}, vcc, 0, v{S+1}, s[{92+2*i}:{93+2*i}]")
    a(f"v_cmp_gt_u32 vcc, 8, v{S+1}\nv_cmp_gt_u32 s[92:93], 32, v0\nv_lshlrev_b32 v5, 2, v{S+1}\nv_mov_b32 v6, {OOB}\ns_and_b64 vcc, vcc, s[92:93]\ns_nop 0\nv_cndmask_b32 v5, v6, v5, vcc")
    a(f"buffer_store_dword v{S}, v5, {srd(S_DBG)}, 0 offen offset:32 sc1")
    a(f"s_mov_b32 s{S_STEP}, 0")
    a("L_hook_ret:")
    if OPT["stamp"] == 2:
        a("s_memtime s[40:41]\ns_waitcnt lgkmcnt(0)\ns_sub_u32 s40, s40, s100\ns_mov_b32 m0, s56\ns_add_u32 s56, s56, 1\nv_writelane_b32 v7, s40, m0")
    a(f"s_cmp_eq_u32 s{S_RET}, 0\ns_cbranch_scc1 L_retA")
    a(f"s_cmp_lg_u32 s{S_HM}, 0\ns_cbranch_scc1 L_loop")


def hmask(hooks):
    m = 0
    for h in list(hooks) + [13]:
        m |= 1 << (31 - h)
    return m


def kv_first():
    G = []
    for tile in range(2):
        G.append(("S", f"s_add_u32 m0, s{S_W4096}, {tile*16384}"))
        G += [("D", k_dma(j) + f" @kv{tile}") for j in range(4)]
        G.append(("S", f"s_add_u32 m0, s{S_W4096}, {65536 + tile*16384}"))
        G += [("D", v_dma(j) + f" @kv{tile}") for j in range(4)]
        G.append(("S", f"s_add_u32 s{S_OFF}, s{S_OFF}, 16384"))
    return G


def kv2():
    G = [("S", f"s_add_u32 m0, s{S_W4096}, {2*16384}")]
    G += [("D", k_dma(j)) for j in range(4)]
    G.append(("S", f"s_add_u32 m0, s{S_W4096}, {65536 + 2*16384}"))
    G += [("D", v_dma(j)) for j in range(4)]
    G.append(("S", f"s_add_u32 s{S_OFF}, s{S_OFF}, 16384"))
    return G


def flat(a, G):
    for kind, ins in G:
        a(ins)
        if " m0," in ins:
            a("s_nop 0")


def gen_kernel(a):
    label = NAME + "_kernel"
    a(f".globl {label}\n.p2align 8\n.type {label},@function\n{label}:")
    a("s_cmp_ge_u32 s2, 256\ns_cbranch_scc1 L_end")
    a("s_load_dwordx16 s[64:79], s[0:1], 0\ns_load_dwordx8 s[80:87], s[0:1], 64\ns_load_dwordx2 s[88:89], s[0:1], 96")
    if OPT["stamp"]:
        a("v_mov_b32 v7, 0\ns_mov_b32 s56, 32")
    a(f"v_and_b32 v1, 63, v0\nv_lshrrev_b32 v2, 6, v0\nv_and_b32 v3, 15, v0\nv_readfirstlane_b32 s{S_WAVE}, v2\nv_lshrrev_b32 v4, 4, v1")
    a(f"s_and_b32 s{S_HEAD}, s2, 7\ns_lshl_b32 s{S_HEAD}, s{S_HEAD}, 2\ns_bfe_u32 s3, s2, 0x20003\ns_add_u32 s{S_HEAD}, s{S_HEAD}, s3")
    a(f"s_lshr_b32 s{S_QBLK}, s2, 5")
    a(f"s_lshl_b32 s{S_W4096}, s{S_WAVE}, 12\ns_lshl_b32 s{S_W8192}, s{S_WAVE}, 13")
    a("v_lshlrev_b32 v30, 4, v1\nv_lshl_add_u32 v29, v2, 11, v30\ns_lshl_b32 s60, s2, 13")
    a("v_lshrrev_b32 v5, 3, v1\nv_lshlrev_b32 v5, 10, v5\nv_and_b32 v6, 7, v1\nv_xor_b32 v6, v6, v4")
    a(f"v_lshl_add_u32 v{V_DX}, v6, 4, v5\nv_xor_b32 v{V_DX+1}, 64, v{V_DX}")
    for j in range(7, 0, -1):
        a(f"v_add_u32 v{V_DX+j}, {8192*j - 1024*(j&3)}, v{V_DX+(j&1)}")
    a(f"v_lshl_add_u32 v5, v2, 4, v4\nv_lshlrev_b32 v5, 13, v5\nv_lshlrev_b32 v6, 2, v4\nv_xor_b32 v6, v6, v3\nv_lshl_add_u32 v{V_DW}, v6, 4, v5")
    for j in range(1, 4):
        a(f"v_add_u32 v{V_DW+j}, {32768*j - 1024*j}, v{V_DW}")
    a(f"s_lshl_b32 s{S_XOFF}, s{S_QBLK}, 18\ns_lshl_b32 s3, s{S_WAVE}, 16\ns_add_u32 s{S_XOFF}, s{S_XOFF}, s3")
    a(f"s_lshl_b32 s{S_WOFF}, s{S_HEAD}, 8")
    a(f"s_mov_b32 s5, s{S_XOFF}\ns_mov_b32 s6, s{S_WOFF}")
    if OPT["rot"] >= 2:
        a(f"s_lshl_b32 s7, s{S_HEAD}, 1\ns_add_u32 s7, s7, s{S_QBLK}")
        if OPT["rot"] == 3:
            a("s_add_u32 s7, s7, s2")
        a("s_and_b32 s7, s7, 7\ns_lshl_b32 s7, s7, 7")
    else:
        a(f"s_and_b32 s7, s2, {7 if OPT['rot'] else 0}\ns_lshl_b32 s7, s7, 7")
    nxt = [f"s_add_u32 s{S_XOFF}, s5, s7", f"s_lshl_b32 s{S_WOFF}, s7, 12", f"s_add_u32 s{S_WOFF}, s{S_WOFF}, s6"]
    a.emit(nxt)
    a("s_waitcnt lgkmcnt(0)")
    stamp(a, 0)
    a.srd(S_X, P_X, 2097152)
    a.srd(S_WQ, P_WQ, 512 * 4096 * 2)
    a.srd(S_WS, P_WS, WS_SIZE)
    a("s_cmp_lg_u32 s2, 0\ns_cbranch_scc1 L_noclear")
    n0 = len(a.vm)
    a(f"v_lshlrev_b32 v5, 4, v0\nv_mov_b32 v120, 0\nv_mov_b32 v121, 0\nv_mov_b32 v122, 0\nv_mov_b32 v123, 0\ns_mov_b32 s3, {WS_KEY}")
    for i in range(6):
        a(f"buffer_store_dwordx4 v[120:123], v5, {srd(S_WS)}, s3 offen sc1\ns_add_u32 s3, s3, 4096")
    del a.vm[n0:]
    a("L_noclear:")

    def chunk_dma(c):
        sl = c % 3
        G = [("S", f"s_add_u32 m0, s{S_W4096}, {WBASE[sl]}")]
        for j in range(4):
            G.append(("D", f"buffer_load_dwordx4 v{V_DW+j}, {srd(S_WQ)}, s{S_WOFF} offen offset:{j*1024} lds @c{c}"))
        for hh in range(2):
            G.append(("S", f"s_add_u32 m0, s{S_W8192}, {XBASE[sl] + hh*4096}"))
            for j in range(4 * hh, 4 * hh + 4):
                G.append(("D", f"buffer_load_dwordx4 v{V_DX+j}, {srd(S_X)}, s{S_XOFF} offen offset:{(j&3)*1024} lds @c{c}"))
        G += [("S", x) for x in [f"s_add_u32 s7, s7, {128 if OPT['rot'] < 2 else (384 if c == 3 else 256)}", "s_and_b32 s7, s7, 1023"] + nxt]
        return G
    a.srd(S_T, P_WR, 1024)
    nclr = len(a.vm)
    a(f"buffer_load_dwordx4 v[84:87], v29, {srd(S_X)}, s60 offen @ln")
    a(f"buffer_load_dwordx4 v[88:91], v29, {srd(S_X)}, s60 offen offset:1024 @ln")
    flat(a, chunk_dma(0))
    if OPT["tx"]:
        assert OPT["rot"] == 1
        a(f"s_add_u32 s3, s2, 1\nv_bfe_u32 v5, v1, 2, 3\nv_add_u32 v5, s3, v5\nv_and_b32 v5, 7, v5\nv_lshlrev_b32 v5, 6, v5\nv_bfe_u32 v6, v1, 1, 1\nv_add_u32 v5, v5, v6")
        a(f"v_lshl_add_u32 v5, v2, 1, v5\nv_lshlrev_b32 v5, 13, v5\nv_and_b32 v6, 1, v1\nv_lshl_add_u32 v5, v6, 7, v5\ns_lshl_b32 s42, s{S_QBLK}, 16\ns_add_u32 s42, s42, s6")
        a(f"buffer_load_dword v26, v5, {srd(S_WQ)}, s42 offen")
        a(f"v_add_u32 v5, s3, v4\nv_and_b32 v5, 7, v5\nv_lshlrev_b32 v5, 7, v5\nv_lshl_add_u32 v5, v3, 10, v5\nv_lshl_add_u32 v39, v2, 14, v5")
        a(f"s_lshr_b32 s91, s2, 3\ns_lshl_b32 s91, s91, 16\nbuffer_load_dword v26, v39, {srd(S_X)}, s91 offen\nv_xor_b32 v39, 512, v39")
    a(f"buffer_load_dwordx4 v[92:95], v30, {srd(S_T)}, 0 offen @wr")
    a.srd(S_DBG, P_DBG, 256)
    a(f"s_cmp_lg_u32 s2, 0\ns_cbranch_scc1 L_nogo\nv_mov_b32 v5, 1\nv_lshlrev_b32 v6, 2, v2\ns_waitcnt vmcnt({len(a.vm) - nclr})")
    a(f"buffer_store_dword v5, v6, {srd(S_DBG)}, 0 offen sc1\nL_nogo:")
    a.vm.pop()
    if OPT["codewarm"]:
        a(f"s_cmp_lg_u32 s{S_WAVE}, 3\ns_cbranch_scc1 L_nowarm")
        a("s_getpc_b64 s[42:43]\nL_pc:\ns_bfe_u32 s3, s2, 0x30003\ns_lshl_b32 s3, s3, 13\nv_lshl_add_u32 v124, v1, 7, s3\nv_min_u32 v124, L_end-L_pc, v124")
        a("v_mov_b32 v125, s43\nv_add_co_u32 v124, vcc, s42, v124\ns_nop 1\nv_addc_co_u32 v125, vcc, 0, v125, vcc\nglobal_load_dword v26, v[124:125], off")
        a.vm.pop()
        a("L_nowarm:")
    for c in range(1, OPT["ninit"]):
        flat(a, chunk_dma(c))
    a(f"s_lshl_b32 s3, s{S_HEAD}, 19")
    a.srd(S_K, P_K, 524288, add_lo="s3")
    a.srd(S_V, P_V, 524288, add_lo="s3")
    if OPT["kvtouch"]:
        a(f"v_lshlrev_b32 v40, 4, v0\ns_lshl_b32 s92, s{S_QBLK}, 12")
        kvt = [f"buffer_load_dword v26, v40, {srd(S_K)}, s92 offen", f"buffer_load_dword v26, v40, {srd(S_V)}, s92 offen"]
        if not OPT["late_touch"]:
            a.emit(kvt)
    a.srd(S_WO, P_WO, 4096 * 512 * 2)
    a(f"v_mov_b32 v6, {OOB}\nv_cmp_eq_u32 vcc, 0, v0\nv_cmp_eq_u32 s[94:95], 0, v1\nv_lshlrev_b32 v5, 3, v2\nv_cndmask_b32 v{V_T0}, v6, 0, vcc\nv_cndmask_b32 v28, v6, v5, s[94:95]")
    a(f"s_lshl_b32 s61, s2, 5\ns_add_u32 s61, s61, {WS_KEY}")
    a(f"s_lshl_b32 s62, s2, 3\ns_lshl_b32 s3, s{S_WAVE}, 1\ns_add_u32 s62, s62, s3\ns_sub_u32 s62, 0x87ff, s62\ns_sub_u32 s63, s62, 1")
    a(f"s_lshr_b32 s59, s2, 3\ns_lshl_b32 s59, s59, 7\ns_and_b32 s3, s2, 7\ns_lshl_b32 s3, s3, 2\ns_add_u32 s59, s59, s3\ns_add_u32 s59, s59, {WS_FLAG}")
    a(f"s_and_b32 s3, s2, 7\ns_lshl_b32 s3, s3, 5\ns_lshr_b32 s{S_U}, s2, 3\ns_add_u32 s3, s3, s{S_U}\ns_sub_u32 s3, 255, s3\ns_sub_u32 s{S_U}, s3, 112")
    a(f"s_mov_b32 s{S_STEP}, 0\ns_mov_b32 s{S_HM}, {hmask([]):#x}\ns_mov_b32 s{S_PASS}, 0")
    a(f"s_cmp_lt_u32 s3, 176\ns_cselect_b32 s{S_STEP}, 30, s{S_STEP}\ns_cselect_b32 s{S_HM}, {hmask([9,10,11,12,13]):#x}, s{S_HM}")
    a(f"s_cmp_lt_u32 s3, 112\ns_cselect_b32 s{S_STEP}, 16, s{S_STEP}\ns_cselect_b32 s{S_HM}, {hmask([0,1,2,3,4,5,6,7]):#x}, s{S_HM}\ns_cselect_b32 s{S_U}, s3, s{S_U}")
    a(f"s_cmp_eq_u32 s2, 0\ns_cselect_b32 s{S_STEP}, 10, s{S_STEP}\ns_cselect_b32 s{S_HM}, {hmask([0,1]):#x}, s{S_HM}")
    a(f"s_lshl_b32 s42, s{S_WAVE}, 17")
    for i in range(8):
        a(f"s_add_u32 s3, s2, {1+i}\ns_and_b32 s3, s3, 7\ns_lshl_b32 s3, s3, 19\ns_add_u32 s{S_HOFF+i}, s3, s42")
    a("v_lshrrev_b32 v5, 1, v3\nv_xor_b32 v5, v5, v4\nv_lshlrev_b32 v5, 4, v5\nv_lshl_add_u32 v5, v3, 7, v5")
    a(f"v_lshl_add_u32 v{V_XA}, v2, 13, v5\nv_xor_b32 v{V_XA+1}, 64, v{V_XA}")
    a(f"v_add_u32 v{V_XA+2}, 131072, v{V_XA}\nv_add_u32 v{V_XA+3}, 131072, v{V_XA+1}")
    a("v_lshrrev_b32 v5, 2, v3\nv_lshl_add_u32 v5, v4, 3, v5\nv_lshlrev_b32 v5, 8, v5\nv_add_u32 v5, 65536, v5\nv_lshlrev_b32 v6, 6, v2")
    a(f"v_lshl_add_u32 v{V_WA}, v3, 4, v5\nv_xor_b32 v{V_WA}, v{V_WA}, v6")
    for t in range(1, 4):
        a(f"v_xor_b32 v{V_WA+t}, {64*t}, v{V_WA}")
    a(f"v_xor_b32 v5, v4, v3\nv_lshlrev_b32 v5, 4, v5\nv_lshl_add_u32 v{V_KA}, v3, 8, v5\nv_xor_b32 v{V_KA}, v{V_KA}, v6")
    for t in range(1, 4):
        a(f"v_xor_b32 v{V_KA+t}, {64*t}, v{V_KA}")
    a("v_lshrrev_b32 v5, 2, v1\nv_and_b32 v6, 7, v5\nv_lshlrev_b32 v6, 5, v6\nv_lshl_add_u32 v5, v5, 8, v6\nv_and_b32 v6, 3, v1")
    a(f"v_lshl_add_u32 v5, v6, 3, v5\nv_add_u32 v{V_VA}, 65536, v5")
    for db in range(1, 8):
        a(f"v_xor_b32 v{V_VA+db}, {32*db}, v{V_VA}")
    a("v_lshl_add_u32 v5, v2, 4, v4\nv_lshlrev_b32 v5, 8, v5\nv_xor_b32 v6, v3, v4")
    a(f"v_lshl_add_u32 v{V_DK}, v6, 4, v5")
    for j in range(1, 4):
        a(f"v_xor_b32 v{V_DK+j}, {64*j}, v{V_DK}")
    a(f"v_lshlrev_b32 v6, 1, v4\nv_xor_b32 v6, v6, v3\nv_lshl_add_u32 v{V_DV}, v6, 4, v5\nv_xor_b32 v{V_DV+1}, 128, v{V_DV}")
    a("v_and_b32 v5, 3, v1\nv_cmp_eq_u32 vcc, 0, v5\nv_mov_b32 v6, 0x3f803f80\ns_nop 0\nv_cndmask_b32 v5, 0, v6, vcc")
    for i in range(4):
        a(f"v_accvgpr_write_b32 a{A_ONES+i}, v5")
    a(f"s_add_u32 s58, s61, {WS_STAT - WS_KEY}\ns_lshl_b32 s90, s{S_QBLK}, 10\ns_lshl_b32 s3, s{S_WAVE}, 8\ns_add_u32 s90, s90, s3\ns_add_u32 s90, s90, {WS_STAT}\nv_lshlrev_b32 v38, 2, v3")
    a(f"v_lshl_add_u32 v30, v2, 13, v30\nv_add_u32 v30, {HK}, v30\nv_lshlrev_b32 v31, 8, v4\nv_lshl_add_u32 v31, v2, 13, v31")
    a(f"s_mov_b32 s{S_OFF}, 0")

    def step_reads(s):
        c, ks = s // 2, s % 2
        sl = c % 3
        b = s % 2
        out = []
        for qb in range(4):
            if sl == 1:
                reg, off = V_XA + 2 + ks, qb * 2048
            else:
                reg, off = V_XA + ks, XBASE[sl] + qb * 2048
            out.append(f"ds_read_b128 {R('a', A_XF + b*16 + qb*4, 4)}, v{reg} offset:{off}")
        for t in range(4):
            for half in range(2):
                for hf in range(2):
                    off = WBASE[sl] - 65536 + (32 * ks + 4 * hf) * 256 + 8 * half
                    out.append(f"ds_read_b64_tr_b16 {R('a', A_WF + b*32 + (2*t+half)*4 + hf*2, 2)}, v{V_WA+t} offset:{off}")
        return out

    def step_mfmas(s):
        b = s % 2
        M = []

        def acc(p, r):
            return (R(p, r, 4), "0" if s == 0 else R(p, r, 4))
        xf = lambda qb: R('a', A_XF + b * 16 + qb * 4, 4)
        wf = lambda T: R('a', A_WF + b * 32 + T * 4, 4)
        for T in range(2):
            d, c = acc('a', A_CS + 4 * T)
            M.append(mfma(d, wf(T), R('a', A_ONES, 4), c))
        order = [(T, qb) for T in range(8) for qb in (range(4) if T % 2 else range(3, -1, -1))]
        if s == 15:
            order = [(T, qb) for qb in range(4) for T in range(8)]
        for T, qb in order:
            d, c = acc('v', V_O + (qb * 8 + T) * 4)
            M.append(mfma(d, wf(T), xf(qb), c))
        return M

    a("WAITVM c0\ns_barrier")
    go_load = f"buffer_load_dwordx4 v[32:35], off, {srd(S_DBG)}, 0 sc1"
    go_chk = [["v_and_b32 v32, v32, v33", "v_and_b32 v34, v34, v35"], ["v_and_b32 v32, v32, v34"], ["v_readfirstlane_b32 s42, v32"], ["s_nop 0"], ["s_cmp_lg_u32 s42, 0"]]
    st_load = [f"buffer_load_dword v{V_SX+4*qb+1}, v38, {srd(S_WS)}, s90 offen offset:{64*qb} sc1" for qb in range(4)]
    st_chk = [[f"v_min3_u32 v39, v{V_SX+1}, v{V_SX+5}, v{V_SX+9}"], [f"v_min_u32 v39, v39, v{V_SX+13}"], ["v_cmp_ne_u32 vcc, 0, v39"], ["s_nop 0"], ["s_cmp_eq_u64 vcc, -1"]]
    stamp(a, 1)
    a.emit(step_reads(0))
    ln1, ln2 = ln_stream()
    dq = []
    for c in range(OPT["ninit"], 3):
        dq += chunk_dma(c)
    if OPT["tx"]:
        dq.append(("D", f"buffer_load_dword v26, v39, {srd(S_X)}, s91 offen"))
    if OPT["late_touch"]:
        dq += [("D", x) for x in kvt]
    fq = list(ln1)
    since = 99
    for s in range(16):
        pre = ["s_waitcnt lgkmcnt(0)"]
        if s % 2 == 1 and s < 15:
            c = (s + 1) // 2
            assert not any(f"@c{c}" in x[1] for x in dq)
            tags = f"c{c}"
            if s == 13:
                tags += ",pub"
                assert not fq
                dq.append(("D", f"buffer_store_dwordx2 v[126:127], v28, {srd(S_WS)}, s61 offen sc1"))
            pre = [f"WAITVM {tags} lgkmcnt(0)", "s_barrier"]
            if s == OPT["ststep"]:
                dq += [("D", x + " @st") for x in st_load]
            if c + 2 <= 7:
                dq += chunk_dma(c + 2)
            elif c == 6:
                dq += kv_first()
        if s == OPT["goload"]:
            dq.insert(0, ("D", go_load + " @go"))
        if s == OPT["gostep"]:
            fq += [["WAITVM go,wr"]] + go_chk[:3] + [[], go_chk[4] + ["s_cbranch_scc0 L_go_wait", "L_go_ok:"],
                                                     [f"V buffer_store_dwordx2 v[36:37], v28, {srd(S_WS)}, s58 offen sc1"]] + ln2
        if s == 14:
            fq += [["WAITVM st"]] + st_chk[:3] + [[], st_chk[4] + ["s_cbranch_scc0 L_st_wait", "L_st_ok:"]] + stats_stream()
            fq += [[f"v_add_u32 v{V_DX}, {HK}, v31", f"v_xor_b32 v{V_DX+1}, 8192, v31"],
                   [f"v_xor_b32 v{V_DX+2}, 16384, v31", f"v_xor_b32 v{V_DX+3}, 24576, v31"],
                   [f"v_add_u32 v{V_DX+1}, {HK}, v{V_DX+1}", f"v_add_u32 v{V_DX+2}, {HK}, v{V_DX+2}"],
                   [f"v_add_u32 v{V_DX+3}, {HK}, v{V_DX+3}"]]
        a.emit(pre)
        if OPT["stamp"] == 2:
            a(f"s_memtime s[40:41]\ns_waitcnt lgkmcnt(0)\nv_writelane_b32 v7, s40, {44+s}")
        M = step_mfmas(s)
        rd = step_reads(s + 1) if s < 15 else []
        special = {}
        if s == 15:
            assert not dq and not fq
            special = {8: [f"ds_write_b128 v30, a[{A_CS}:{A_CS+3}]"], 9: [f"ds_write_b128 v30, a[{A_CS+4}:{A_CS+7}] offset:1024"],
                       15: ["WAITVM kv0 lgkmcnt(0)", "s_barrier"]}
            cs = [f"ds_read_b128 v[{V_CS+4*T}:{V_CS+4*T+3}], v{V_DX + T//2} offset:{(T%2)*1024}" for T in range(8)]
            kr = [k_read(0, kb, t) for kb in range(2) for t in range(4)]
            for i in range(8):
                special[16 + 2 * i] = (cs + kr)[2 * i:2 * i + 2]
        nd = len([x for x in dq if x[0] == "D"])
        space = 2 if (s == 0 and OPT['ninit'] == 1) else 4
        for g, m in enumerate(M):
            a(m)
            since += 1
            if g in special:
                a.emit(special[g])
                continue
            if dq and dq[0][0] == "D" and since >= space and g % 2 == 1:
                a(dq.pop(0)[1])
                since = 0
                continue
            if dq and dq[0][0] == "S" and (space == 2 or not (rd and g % 2 == 0)):
                a(dq.pop(0)[1])
                while space == 2 and dq and dq[0][0] == "S":
                    a(dq.pop(0)[1])
            if rd and g % 2 == 0:
                a.emit(rd[:2])
                rd = rd[2:]
            elif fq:
                a.emit([x[2:] if x.startswith("V ") else x for x in fq.pop(0)])
        assert not rd
    stamp(a, 2)
    a("s_waitcnt lgkmcnt(0)")
    QK0 = qk_mfmas(first_c="0")
    dq = kv2()

    def fin_pk(qb):
        m = V_SX + 4 * qb
        for i in range(16):
            r = V_O + 32 * qb + 2 * i
            a(f"v_pk_fma_f32 v[{r}:{r+1}], v[{V_CS+2*i}:{V_CS+2*i+1}], v[{m}:{m+1}], v[{r}:{r+1}] op_sel_hi:[1,0,1]")
        for i in range(16):
            r = V_O + 32 * qb + 2 * i
            a(f"v_pk_mul_f32 v[{r}:{r+1}], v[{r}:{r+1}], v[{m+2}:{m+3}] op_sel_hi:[1,0]")

    def fin_cv(qb):
        out = []
        for i in range(16):
            r = V_O + 32 * qb + 2 * i
            out.append(f"v_cvt_pk_bf16_f32 v{r}, v{r}, v{r+1}")
            out.append(f"v_accvgpr_write_b32 a{A_Q + 16*qb + i}, v{r}")
        return out
    for qb in range(4):
        fin_pk(qb)
        cv = fin_cv(qb)
        if qb == 0:
            a.emit(cv)
        else:
            for i in range(8):
                a(QK0[8 * (qb - 1) + i])
                if dq and i % 2 == 0:
                    a(dq.pop(0)[1])
                a.emit(cv[4 * i:4 * i + 4])
    assert not dq

    def tile_max(qb):
        s0, m = V_S + 8 * qb, V_NEGM + 4 * qb
        return [f"v_max3_f32 v{m}, v{s0}, v{s0+1}, v{s0+2}", f"v_max3_f32 v{m}, v{m}, v{s0+3}, v{s0+4}",
                f"v_max3_f32 v{m}, v{m}, v{s0+5}, v{s0+6}", f"v_max_f32 v{m}, v{m}, v{s0+7}"]
    mx = tile_max(0) + tile_max(1) + tile_max(2)
    a.emit(mx[:2])
    mx = mx[2:]
    for i in range(8):
        a(QK0[24 + i])
        a.emit(mx[:2])
        mx = mx[2:]
    for kb in (1, 0):
        for t in range(3, -1, -1):
            a(k_read(1, kb, t))
    a.emit(tile_max(3))
    a.cross_reduce("v_max_f32", [V_NEGM + 4 * qb for qb in range(4)], [V_NEGM + 4 * qb + 1 for qb in range(4)])
    for i in range(32):
        a(f"v_sub_f32 v{V_S+i}, v{V_S+i}, v{V_NEGM + 4*(i//8)}")
    for qb in range(4):
        m = V_NEGM + 4 * qb
        for i in (3, 2, 1, 0):
            a(f"v_sub_f32 v{m+i}, 0, v{m}")
    a("v_lshrrev_b32 v5, 3, v1\nv_lshlrev_b32 v5, 10, v5\nv_and_b32 v6, 7, v1\nv_lshlrev_b32 v26, 1, v4\nv_xor_b32 v6, v6, v26\nv_lshl_add_u32 v5, v6, 4, v5")
    a(f"s_lshl_b32 s3, s{S_QBLK}, 7\nv_add_u32 v{V_DWO}, s3, v5")
    for j in range(1, 4):
        a(f"v_add_u32 v{V_DWO+j}, {8192*j - 1024*j}, v{V_DWO}")
    if OPT["wot1"]:
        a(f"v_lshlrev_b32 v5, 6, v0\ns_lshl_b32 s3, s2, 14\nbuffer_load_dword v34, v5, {srd(S_WO)}, s3 offen")
    a(f"s_lshr_b32 s{S_FL}, s{S_HEAD}, 2\ns_lshl_b32 s{S_FL}, s{S_FL}, 2\ns_add_u32 s{S_FL}, s{S_FL}, s{S_WAVE}\ns_lshl_b32 s{S_FL}, s{S_FL}, 7\ns_add_u32 s{S_FL}, s{S_FL}, {WS_FLAG}")
    a(f"s_mov_b32 s{S_PK}, 0x20000000")
    a("L_sm0:")
    a("v_and_b32 v35, 7, v1\nv_lshlrev_b32 v35, 2, v35")
    a(f"s_getpc_b64 s[42:43]\nL_pc2:\ns_lshr_b32 s3, s2, 3\ns_lshl_b32 s3, s3, 2\ns_add_u32 s3, s3, s{S_WAVE}\ns_lshl_b32 s3, s3, 8\ns_add_u32 s3, s3, L_hook-L_pc2")
    a(f"v_and_b32 v5, 1, v1\nv_lshl_add_u32 v5, v5, 7, s3\nv_min_u32 v5, L_end-L_pc2, v5\nv_mov_b32 v{V_CW+1}, s43\nv_add_co_u32 v{V_CW}, vcc, s42, v5\ns_nop 1\nv_addc_co_u32 v{V_CW+1}, vcc, 0, v{V_CW+1}, vcc")
    assert OPT["nsum"] == 4
    a("v_lshrrev_b32 v5, 2, v1\nv_bfe_u32 v6, v1, 3, 2\nv_lshlrev_b32 v6, 5, v6\nv_lshl_add_u32 v5, v5, 7, v6\nv_and_b32 v6, 3, v1\nv_lshl_add_u32 v5, v6, 3, v5")
    a(f"v_lshl_add_u32 v5, v2, 12, v5\nv_add_u32 v{V_WE}, {HK}, v5")
    for nb in range(1, 4):
        a(f"v_xor_b32 v{V_WE+nb}, {32*nb}, v{V_WE}")
    for i in range(0, 32, 4):
        for k in range(4):
            a(sm_exp(i + k))
        a("s_nop 0")
        a(sm_cvt(0, i + 1))
        a(sm_cvt(0, i + 3))
        if i >= 8 * OPT["nsum"]:
            l = V_L + i // 8
            if i % 8 == 0:
                a(f"v_add_f32 v{l}, v{V_T + i % 8}, v{V_T + (i+1) % 8}")
            else:
                a(sm_add(i))
                a(sm_add(i + 1))
            a(sm_add(i + 2))
            a(sm_add(i + 3))
    a("s_waitcnt lgkmcnt(0)")
    stamp(a, 3)
    a.emit(period(0, first=True))
    a(f"s_cmp_lg_u32 s{S_STEP}, 16\ns_cbranch_scc1 L_loop_p1")
    ffn_weight_dma(a)
    a("s_branch L_loop_p1")
    a("L_go_wait:")
    poll(a, "go", go_load, go_chk[0] + go_chk[1] + ["s_nop 0"] + go_chk[2] + ["s_nop 3"] + go_chk[4], ret="L_go_ok")
    a("L_st_wait:")
    poll(a, "st", "\n".join(st_load), sum(st_chk, []), ret="L_st_ok")
    a(".p2align 6\nL_loop:")
    for p in range(8):
        if p == 1:
            a("L_loop_p1:")
        a.emit(period(p, hook=(p % 4 == 3), keep=(p == 4), prog=(p == 2 and OPT['dyn'])))
        if OPT["stamp"] == 3 and p % 4 == 3:
            a("s_memtime s[40:41]\ns_mov_b32 m0, s56\ns_addk_i32 s56, 1\ns_waitcnt lgkmcnt(0)\nv_writelane_b32 v7, s40, m0".replace("s_addk_i32 s56, 1", "s_cselect_b32 s100, 1, 0\ns_add_u32 s56, s56, 1\ns_cmp_eq_u32 s100, 1"))
        if p == 3:
            a(f"s_cbranch_scc1 L_hookA\nL_retA:")
    a("s_cbranch_scc0 L_loop")
    a(f"s_mov_b32 s{S_RET}, 1\ns_branch L_hook")
    a(f"L_hookA:\ns_mov_b32 s{S_RET}, 0")
    gen_hooks(a)
    a("L_last:")
    a.vm += ["kv29"] * 8 + ["kv30"] * 8
    if OPT["dyn"]:
        a("v_add_u32 v34, -1, v34\nv_lshrrev_b32 v5, 2, v35\nv_and_or_b32 v34, v34, -8, v5\nv_and_b32 v6, 56, v1")
        for j in range(0, 8, 4):
            for i in range(4):
                a(f"v_readlane_b32 s{40+i}, v34, {j+i}")
            for i in range(4):
                a(f"v_cmp_lt_u32 s[{92+2*i}:{93+2*i}], s{40+i}, v34")
            for i in range(4):
                a(f"v_addc_co_u32 v6, vcc, 0, v6, s[{92+2*i}:{93+2*i}]")
        a(f"v_lshlrev_b32 v6, 2, v6\nds_permute_b32 v29, v6, v35\ns_lshl_b32 s42, s{S_WAVE}, 17\ns_waitcnt lgkmcnt(0)\nv_lshl_add_u32 v5, v29, 17, s42\ns_nop 0")
        for i in range(8):
            a(f"v_readlane_b32 s{S_HOFF+i}, v5, {i}")
    else:
        a(f"s_add_u32 s3, s2, 1\nv_add_u32 v29, s3, v1\nv_and_b32 v29, 7, v29\nv_lshlrev_b32 v29, 2, v29")
    touch = []
    if OPT["wot2"]:
        a(f"s_add_u32 s3, s2, s{S_WAVE}\ns_add_u32 s3, s3, 5\ns_and_b32 s3, s3, 7\ns_lshl_b32 s3, s3, 19\ns_lshr_b32 s42, s2, 3\ns_lshl_b32 s42, s42, 14\ns_add_u32 s42, s42, s3\ns_add_u32 s43, s42, 8192")
        a("v_lshlrev_b32 v5, 7, v1")
        touch = [f"buffer_load_dword v34, v5, {srd(S_WO)}, s{42+i} offen" for i in range(2)]
    for p in range(7):
        a.emit(period(p, last=True, wok=(p + 4 if p >= 2 else None), kread=(p < 6), ek=(p if p < 6 else 11),
                      er=(p - 2 if p >= 2 else None), touch=(touch[p:p + 1] if p < 2 else ())))
    for db in range(8):
        a(v_read(7, db, 0))
        a(v_read(7, db, 1))
    fl_load = lambda r: f"buffer_load_dword v{r}, v29, {srd(S_WS)}, s{S_FL} offen sc1"
    V_OA = 52
    V_FA = 56
    V_RL = 64
    V_ACC = 64
    V_OF = 128
    NST = 8
    M = pv_mfmas(7)
    T = {}
    for n_, j in enumerate((12, 13)):
        w = wo_issue(j)
        T[4 + 9 * n_] = w[:2]
        for i in range(4):
            T[5 + 9 * n_ + 2 * i] = [w[2 + i]]
    T[8] = [f"v_accvgpr_read_b32 v{V_RL+2*qb+1}, a{A_SUM+4*qb}" for qb in (3, 2)]
    T[10] = [f"v_accvgpr_read_b32 v{V_RL+2*qb+1}, a{A_SUM+4*qb}" for qb in (1, 0)]
    T[12] = [f"s_mov_b32 s3, {f32bits(2.0 ** OPT['thr']):#x}"] + [f"v_cmp_nlt_f32 s[{92+2*qb}:{93+2*qb}], v{V_RL+2*qb+1}, s3" for qb in (0, 1)]
    T[15] = [f"v_cmp_nlt_f32 s[{92+2*qb}:{93+2*qb}], v{V_RL+2*qb+1}, s3" for qb in (2, 3)]
    T[17] = ["s_or_b64 s[92:93], s[92:93], s[94:95]", "s_or_b64 s[96:97], s[96:97], s[98:99]", "v_lshlrev_b32 v5, 2, v2"]
    T[19] = ["s_or_b64 s[92:93], s[92:93], s[96:97]", "s_or_b32 s92, s92, s93", f"v_add_u32 v5, {7*16384}, v5"]
    T[21] = ["v_mov_b32 v6, s92", f"v_mov_b32 v{V_RL+8}, {7*16384}"]
    T[22] = ["ds_write_b32 v5, v6"]
    for qb in range(4):
        T[23 + qb] = [f"v_rcp_f32 v{V_RL+2*qb}, v{V_RL+2*qb+1}"]
    T[27] = ["WAITVM wo5 lgkmcnt(0)", "s_barrier"]
    rd5 = wo_reads(5, early=True)
    T[28] = [f"ds_read_b128 v[{V_RL+8}:{V_RL+11}], v{V_RL+8}"]
    for i in range(4):
        T[29 + i] = rd5[2 * i:2 * i + 2]
    wr_ = []
    for i in range(4):
        wr_ += [f"v_subrev_u32 v{V_WR+i}, {HK}, v{V_WE+i}", f"v_subrev_u32 v{V_WR+4+i}, 65536, v{V_WE+i}", f"v_mov_b32 v{V_WR+8+i}, v{V_WE+i}"]
    for i in range(4):
        T[i] = wr_[2 * i:2 * i + 2]
    T[33], T[34] = wr_[8:10], wr_[10:12]
    for g, m in enumerate(M):
        if g >= 4 and g % 4 == 0 and g < 28:
            db = g // 4 - 1
            a(f"s_waitcnt lgkmcnt({14 - 2*db + (1 if g > 22 else 0)})")
        a(m)
        a.emit(T.get(g, []))
    stamp(a, 4)
    a(f"s_waitcnt lgkmcnt(0)\nv_or3_b32 v6, v{V_RL+8}, v{V_RL+9}, v{V_RL+10}\nv_or_b32 v6, v6, v{V_RL+11}\nv_lshlrev_b32 v5, 4, v1\nv_readfirstlane_b32 s3, v6")
    a.emit(wo_issue(14))
    a(f"s_cmp_lg_u32 s{S_PASS}, 0\ns_cselect_b32 s3, 0, s3\ns_cmp_lg_u32 s3, 0\ns_cbranch_scc1 L_fallback")
    a("s_barrier")
    a.emit(wo_issue(15))
    a(f"s_lshl_b32 s3, s{S_QBLK}, 21\ns_lshl_b32 s42, s{S_WAVE}, 19\ns_add_u32 s3, s3, s42\ns_lshl_b32 s42, s{S_HEAD}, 12\ns_add_u32 s3, s3, s42\ns_add_u32 s3, s3, {WS_O}")
    blk = 0
    nmix = OPT["nmix"]
    nrd = max(10, nmix)
    for qb in range(4):
        for j in range(4):
            r = V_O + (qb * 8 + 2 * j) * 4
            if blk < nrd:
                a(f"WAITVM wo{6+blk}" + (" lgkmcnt(0)" if blk > nmix else ""))
                a.emit(wo_reads(6 + blk))
            for i in range(4):
                a(f"v_pk_mul_f32 v[{r+2*i}:{r+2*i+1}], v[{r+2*i}:{r+2*i+1}], v[{V_RL+2*qb}:{V_RL+2*qb+1}] op_sel_hi:[1,0]")
            for i in range(4):
                a(f"v_cvt_pk_bf16_f32 v{r+i}, v{r+2*i}, v{r+2*i+1}")
            a(f"buffer_store_dwordx4 v[{r}:{r+3}], v5, {srd(S_WS)}, s3 offen offset:{j*1024} sc1 @o")
            if blk < nmix:
                a("s_waitcnt lgkmcnt(0)")
                a.emit(wo_issue(16 + blk))
            blk += 1
        if qb < 3:
            a("s_add_u32 s3, s3, 131072")
    a("s_waitcnt lgkmcnt(0)")
    nxt_j = 16 + nmix
    while nxt_j < min(26, 16 + nmix + OPT["npre"]):
        a.emit(wo_issue(nxt_j))
        nxt_j += 1
    stamp(a, 5)
    a(f"s_lshl_b32 s3, s{S_HEAD}, 19\ns_add_u32 s3, s3, {WS_O}\nv_add_u32 v{V_OA}, s3, v5")
    for rb in range(1, 4):
        a(f"v_add_u32 v{V_OA+rb}, {131072*rb}, v{V_OA}")
    a(KEYS_ADDR)
    a(f"s_lshl_b32 s43, s{S_QBLK}, 7\ns_add_u32 s43, s43, {WS_UFLAG}")
    uf_load = f"buffer_load_dword v35, v5, {srd(S_WS)}, s43 offen sc1"

    def o_issue(k):
        st = (k + 3) % NST
        out = [f"buffer_load_dwordx4 v[{V_OF+st*16+rb*4}:{V_OF+st*16+rb*4+3}], v{V_OA+rb}, {srd(S_WS)}, s{S_KSO} offen offset:{(k%4)*1024} sc1 @o{k}"
               for rb in range(4)]
        pre = [f"s_lshr_b32 s{S_KSO}, s{S_HOFF + k//4}, 5"] if k % 4 == 0 else []
        return pre, out
    PF = 4

    def ring_fill():
        for k in range(PF + 1):
            pre, out = o_issue(k)
            a.emit(pre + out)
    rdy = lambda r: [f"v_cmp_eq_u32 vcc, 1, v{r}", "s_nop 0", f"s_or_b32 s{S_RDY}, s{S_RDY}, vcc_lo"]
    a(f"s_mov_b32 s{S_RDY}, 0\nv_mov_b32 v6, 1")
    a("WAITVM o\ns_barrier")
    a(f"buffer_store_dword v6, v{V_T0}, {srd(S_WS)}, s59 offen sc1")
    stamp(a, 6)
    while nxt_j < 26:
        a.emit(wo_issue(nxt_j))
        nxt_j += 1
    a(uf_load + " @uf")
    a(KEYS_LOAD + " @uf")
    a(fl_load(25) + " @uf")
    while nxt_j < 30:
        a(f"WAITVM wo{nxt_j-10}")
        a.emit(wo_reads(nxt_j - 10))
        a("s_waitcnt lgkmcnt(0)")
        a.emit(wo_issue(nxt_j))
        nxt_j += 1
    a("WAITVM uf")
    poll(a, "flag", fl_load(25), rdy(25) + [f"s_and_b32 s3, s{S_RDY}, 3", "s_cmp_eq_u32 s3, 3"])
    ring_fill()
    a("L_G:")
    stamp(a, 7)
    poll(a, "upd", uf_load + "\n" + KEYS_LOAD, ["v_cmp_eq_u32 vcc, 1, v35", "s_nop 0", "s_cmp_eq_u32 vcc_lo, -1"])
    a(f"v_and_b32 v{V_H}, 0x7ff, v{V_H}\ns_lshl_b32 s61, s{S_HEAD}, 6\ns_sub_u32 s61, 2047, s61")
    for t in range(8):
        a(f"v_readlane_b32 s{S_IDX+t}, v{V_H}, {t}")
    a(f"s_lshl_b32 s58, s{S_HEAD}, 16\ns_lshl_b32 s62, s{S_QBLK}, 7\ns_add_u32 s58, s58, s62\ns_add_u32 s62, s62, {WS_UPD}")
    prep = [["v_lshrrev_b32 v58, 3, v0", "v_and_b32 v59, 7, v0"], [f"v_lshlrev_b32 v{V_FA}, 10, v58", f"v_lshl_add_u32 v{V_FA}, v59, 4, v{V_FA}"],
            [f"v_add_u32 v{V_FA+1}, 32768, v{V_FA}", f"v_mov_b32 v60, {OOB}"], [f"v_mov_b32 v61, {OOB}", "v_sub_u32 v62, s61, v58"],
            ["v_subrev_u32 v63, 32, v62", "v_lshlrev_b32 v5, 4, v59"]]
    for t in range(8):
        prep += [[f"v_cmp_eq_u32 s[98:99], s{S_IDX+t}, v62", f"v_cmp_eq_u32 s[42:43], s{S_IDX+t}, v63"], [f"v_add_u32 v6, {1024*t}, v5"],
                 ["v_cndmask_b32 v60, v60, v6, s[98:99]", "v_cndmask_b32 v61, v61, v6, s[42:43]"]]
    fin = [f"buffer_load_dwordx4 v[16:19], v{V_FA}, {srd(S_WS)}, s58 offen sc1 @fin", f"buffer_load_dwordx4 v[36:39], v60, {srd(S_WS)}, s62 offen sc1 @fin",
           f"buffer_load_dwordx4 v[20:23], v{V_FA+1}, {srd(S_WS)}, s58 offen sc1 @fin", f"buffer_load_dwordx4 v[60:63], v61, {srd(S_WS)}, s62 offen sc1 @fin",
           f"buffer_load_dwordx4 v[8:11], v{V_FA}, {srd(S_X)}, s58 offen @finx", f"buffer_load_dwordx4 v[12:15], v{V_FA+1}, {srd(S_X)}, s58 offen @finx"]
    stamp(a, 8)

    gate = []
    for c in range(8):
        xn = 16 + c
        up = (36 + c) if c < 4 else (60 + c - 4)
        t = [24, 25, 26, 27]
        gate += [unpack(24, xn, 1), unpack(26, up, 1),
                 ["v_add_f32 v24, v24, v26", "v_add_f32 v25, v25, v27"],
                 [f"v_cvt_pk_bf16_f32 v{xn}, v24, v25"], unpack(24, xn, 1),
                 [f"v_mul_f32 v26, {f32bits(-LOG2E):#x}, v24", f"v_mul_f32 v27, {f32bits(-LOG2E):#x}, v25"],
                 ["v_exp_f32 v26, v26"], ["v_exp_f32 v27, v27"],
                 ["v_add_f32 v26, 1.0, v26", "v_add_f32 v27, 1.0, v27"],
                 ["v_rcp_f32 v26, v26"], ["v_rcp_f32 v27, v27"],
                 ["v_mul_f32 v24, v24, v26", "v_mul_f32 v25, v25, v27"],
                 [f"v_cvt_pk_bf16_f32 v{xn}, v24, v25"]]
    gate += [["v_and_b32 v5, 7, v3", "v_xor_b32 v5, v5, v4"], ["v_lshlrev_b32 v5, 4, v5", "v_lshl_add_u32 v5, v3, 8, v5"],
             ["v_lshl_add_u32 v24, v2, 12, v5", "v_xor_b32 v25, 64, v24"],
             ["v_lshlrev_b32 v5, 1, v59", "v_and_b32 v6, 7, v58"], ["v_xor_b32 v5, v5, v6", "v_lshlrev_b32 v5, 4, v5"],
             ["v_and_b32 v6, 15, v58", "v_lshl_add_u32 v5, v6, 8, v5"], ["v_lshrrev_b32 v6, 4, v58", "v_lshl_add_u32 v26, v6, 14, v5"],
             ["v_xor_b32 v27, 16, v26"]]
    waits = []
    extra = {4: fin[0], 5: fin[1], 6: fin[2], 7: fin[3], 28: fin[4], 29: fin[5]}
    w30, w31 = wo_issue(30), wo_issue(31)
    for i in range(4):
        extra[9 + 2 * i] = w30[2 + i]
        extra[17 + 2 * i] = w31[2 + i]
    jread = {k: k + 15 for k in range(5, 15)}
    jread[21], jread[29] = 30, 31
    for k in range(32):
        st = (k + 3) % NST
        jr = jread.get(k)
        tags = f"o{k}" + (f",wo{jr}" if jr is not None else "") + (",fin" if k == 13 else "")
        a(f"WAITVM {tags} lgkmcnt(0)")
        if OPT["stamp"] == 4 and k % 2 == 0:
            a(f"s_memtime s[40:41]\ns_waitcnt lgkmcnt(0)\nv_writelane_b32 v7, s40, {44+k//2}")
        fill = {}
        if k % 4 == 0 and 4 <= k <= 24:
            sl = (k + PF) // 4
            if k >= 8:
                a.emit(rdy(34 + ((k - 6) // 4) % 2))
            a(f"s_bitcmp1_b32 s{S_RDY}, {sl}\ns_cbranch_scc0 L_hw{sl}\nL_hw{sl}_ok:")
            waits.append(sl)
        if k % 4 == 2 and k <= 18:
            fill[10] = [fl_load(34 + (k // 4) % 2)]
        if jr is not None:
            rd = wo_reads(jr)
            for i in range(4):
                fill[1 + 4 * i] = rd[2 * i:2 * i + 2]
        if 1 <= k and k + PF < 32:
            pre, out = o_issue(k + PF)
            a.emit(pre)
            for i in range(4):
                fill[4 * i] = [out[i]]
        if k == 9:
            a.emit(w30[:2])
        if k == 17:
            a.emit(w31[:2])
        if k in extra:
            assert not prep or k < 4
            fill[6] = [extra[k]]
        order = [(nb, (3 - i if nb & 1 else i)) for nb in range(4) for i in range(4)]
        wr = []
        if k == 31:
            order = [(nb, rb) for rb in range(4) for nb in range(4)]
            assert not gate
            for rb in range(4):
                for nb in range(4):
                    r = V_ACC + (rb * 4 + nb) * 4
                    wr.append(f"ds_write_b128 v{24 + (nb&1)}, v[{r}:{r+3}] offset:{rb*16384 + (nb>>1)*128}")
            for g in range(8, 16):
                fill[g] = [wr.pop(0)]
        f_, d_ = WO_DST[WO_J[k]]
        for g, (nb, rb) in enumerate(order):
            d = R('v', V_ACC + (rb * 4 + nb) * 4, 4)
            a(mfma(d, R(f_, d_ + nb * 4, 4), R('v', V_OF + st * 16 + rb * 4, 4), "0" if k == 0 else d))
            if g in fill:
                a.emit(fill[g])
            elif prep:
                a.emit(prep.pop(0))
            elif gate and k >= 13:
                a.emit(gate.pop(0))
    a.emit(wr[:4])
    a.srd(S_T, P_OUT, 2097152)
    a.emit(wr[4:])
    stamp(a, 9)
    G0 = 128
    a.emit(unpack(G0, 16, 8))
    a("s_waitcnt lgkmcnt(0)\ns_barrier")
    for h in range(2):
        for w in range(4):
            for q in range(2):
                d = V_ACC + (h * 4 + w) * 8 + q * 4
                a(f"ds_read_b128 v[{d}:{d+3}], v{26+q} offset:{h*32768 + w*4096}")
    a("WAITVM finx")
    a.emit(unpack(G0 + 16, 8, 8))
    pk = lambda op, d, x, y: f"v_pk_{op}_f32 v[{d}:{d+1}], v[{x}:{x+1}], v[{y}:{y+1}]"
    for h in range(2):
        s = V_ACC + 32 * h
        a(f"s_waitcnt lgkmcnt({8 - 8*h})")
        for i in range(0, 8, 2):
            a(pk("add", s + i, s + i, s + 8 + i))
            a(pk("add", s + 16 + i, s + 16 + i, s + 24 + i))
        for i in range(0, 8, 2):
            a(pk("add", s + i, s + i, s + 16 + i))
        for op, other in (("mul", G0 + 8 * h), ("add", G0 + 16 + 8 * h)):
            for i in range(4):
                a(f"v_cvt_pk_bf16_f32 v{s+8+i}, v{s+2*i}, v{s+2*i+1}")
            a.emit(unpack(s, s + 8, 4))
            for i in range(0, 8, 2):
                a(pk(op, s + i, s + i, other + i))
        for i in range(4):
            a(f"v_cvt_pk_bf16_f32 v{s+8+i}, v{s+2*i}, v{s+2*i+1}")
        a(f"buffer_store_dwordx4 v[{s+8}:{s+11}], v{V_FA+h}, {srd(S_T)}, s58 offen")
    if OPT["stamp"]:
        stamp(a, 10)
        a("s_waitcnt vmcnt(0)")
        stamp(a, 11)
        a(f"v_lshlrev_b32 v5, 2, v0\ns_lshl_b32 s3, s2, 10\ns_add_u32 s3, s3, {WS_STAMP}")
        a(f"buffer_store_dword v7, v5, {srd(S_WS)}, s3 offen")
    a("s_endpgm")
    for sl in waits:
        a(f"L_hw{sl}:\nv_mov_b32 v28, 0")
        poll(a, f"hw{sl}", fl_load(28), rdy(28) + [f"s_bitcmp1_b32 s{S_RDY}, {sl}"], ret=f"L_hw{sl}_ok")
    a("L_fallback:")
    a(f"s_mov_b32 s{S_PASS}, 1\ns_mov_b32 s{S_STEP}, 0\ns_mov_b32 s{S_HM}, {hmask([]):#x}\ns_mov_b32 s{S_OFF}, 0")
    for qb in range(4):
        a(f"v_mov_b32 v{V_NEGM+4*qb}, 0xff800000")
    a("v_and_b32 v5, 3, v1\nv_cmp_eq_u32 vcc, 0, v5\nv_mov_b32 v6, 0x3f803f80\ns_nop 0\nv_cndmask_b32 v5, 0, v6, vcc")
    for i in range(4):
        a(f"v_accvgpr_write_b32 a{A_ONES+i}, v5")
    a("s_waitcnt vmcnt(0) lgkmcnt(0)")
    a("L_fb_loop:")
    a(f"s_barrier\ns_mov_b32 m0, s{S_W4096}\ns_nop 0")
    for j in range(4):
        a(k_dma(j))
    a("s_waitcnt vmcnt(0)\ns_barrier")
    for u in range(2):
        for kb in range(2):
            for t in range(4):
                a(k_read(u, kb, t))
        a("s_waitcnt lgkmcnt(0)")
        a.emit(qk_mfmas(first_c="0"))
        a("s_nop 7")
        for qb in range(4):
            m = V_NEGM + 4 * qb
            for i in range(0, 8, 2):
                a(f"v_max3_f32 v{m}, v{m}, v{V_S+8*qb+i}, v{V_S+8*qb+i+1}")
    a(f"s_add_u32 s{S_OFF}, s{S_OFF}, 16384\ns_cmp_lt_u32 s{S_OFF}, 524288\ns_cbranch_scc1 L_fb_loop")
    a.cross_reduce("v_max_f32", [V_NEGM + 4 * qb for qb in range(4)], [V_NEGM + 4 * qb + 1 for qb in range(4)])
    for qb in range(4):
        m = V_NEGM + 4 * qb
        for i in (3, 2, 1, 0):
            a(f"v_sub_f32 v{m+i}, 0, v{m}")
    a(f"s_mov_b32 s{S_OFF}, 0\ns_barrier")
    flat(a, kv_first())
    flat(a, kv2())
    a("s_waitcnt vmcnt(0)\ns_barrier")
    for kb in range(2):
        for t in range(4):
            a(k_read(0, kb, t))
    a("s_waitcnt lgkmcnt(0)")
    a.emit(qk_mfmas())
    a("s_nop 7")
    for kb in range(2):
        for t in range(4):
            a(k_read(1, kb, t))
    a("s_branch L_sm0")
    a("L_end:\ns_endpgm")
    return f""".amdhsa_kernel {label}
  .amdhsa_next_free_vgpr 512
  .amdhsa_next_free_sgpr 102
  .amdhsa_accum_offset 256
  .amdhsa_group_segment_fixed_size 0
  .amdhsa_kernarg_size 104
  .amdhsa_user_sgpr_count 2
  .amdhsa_user_sgpr_kernarg_segment_ptr 1
  .amdhsa_system_sgpr_workgroup_id_x 1
.end_amdhsa_kernel"""


def build():
    a = Asm()
    hdr = ["; One fused kernel, 256 workgroups (one per CU). Emitted by the author's own generator script (hand-designed schedule).",
           "; @launch grid=(256,1,1) block=(256,1,1) lds=163840"]
    a('.amdgcn_target "amdgcn-amd-amdhsa--gfx950"\n.text')
    d = gen_kernel(a)
    return "\n".join(hdr) + "\n" + "\n".join(a.L) + '\n.section .rodata,"a"\n.p2align 6\n' + d + "\n"


if __name__ == "__main__":
    path = sys.argv[1] if len(sys.argv) > 1 else f"cdna_kernels/{NAME}.s"
    for arg in sys.argv[2:]:
        k, v = arg.split("=")
        OPT[k] = eval(v)
    open(path, "w").write(build())
```

```python
import sys, struct

NAME = "recurrent_scan__mha_block_cached__moe_arch_mod__prompt"

WS_XN = 0
WS_KEY = 2 << 20
WS_FLAG = WS_KEY + 8192
WS_FFLAG = WS_KEY + 12288
WS_UFLAG = WS_KEY + 13312
WS_STAT = WS_KEY + 16384
WS_UPD = WS_KEY + 24576
WS_YP = 3 << 20
WS_O = 8 << 20
WS_STAMP = 32 << 20
WS_SIZE = 268435456
OOB = 0x40000000

OPT = dict(osc=' sc1', stamp=False, nsum=4, thr=64, codewarm=True, wot1=True, wot2=False, early=True, flpos=9, keep=True, kvtouch=True, rot=True, dyn=True, nmix=0, npre=0, ninit=2, tx=True, late_touch=False, gostep=3, goload=2, ststep=11, snake=True)
LOG2E = 1.4426950408889634


def f32bits(x):
    return struct.unpack("<I", struct.pack("<f", x))[0]


def R(p, s, n=1):
    return f"{p}{s}" if n == 1 else f"{p}[{s}:{s+n-1}]"


def is_vmem(line):
    return line.startswith("buffer_") or line.startswith("global_")


class Asm:
    def __init__(self):
        self.L = []
        self.vm = []

    def __call__(self, s):
        for line in s.split("\n"):
            line = line.strip()
            if not line:
                continue
            tag = None
            if "@" in line and not line.startswith("."):
                line, tag = [x.strip() for x in line.split("@")]
            if line.startswith("WAITVM"):
                parts = line.split(None, 2)
                last = max(i for i, t in enumerate(self.vm) if t in parts[1].split(","))
                n = len(self.vm) - 1 - last
                assert n <= 63, n
                line = f"s_waitcnt vmcnt({n})" + (" " + parts[2] if len(parts) > 2 else "")
            if is_vmem(line):
                self.vm.append(tag)
            self.L.append(line if line.endswith(":") or line.startswith(".") else "    " + line)

    def emit(self, lst):
        for x in lst:
            self(x)

    def srd(self, d, base, size, add_lo=None):
        if add_lo is None:
            self(f"s_mov_b32 s{d}, s{base}\ns_mov_b32 s{d+1}, s{base+1}")
        else:
            self(f"s_add_u32 s{d}, s{base}, {add_lo}\ns_addc_u32 s{d+1}, s{base+1}, 0")
        self(f"s_mov_b32 s{d+2}, {size}\ns_mov_b32 s{d+3}, 0x00020000")

    def wave_reduce(self, op, v, t):
        for ctl in ("quad_perm:[1,0,3,2]", "quad_perm:[2,3,0,1]", "row_half_mirror", "row_mirror"):
            self("s_nop 1")
            self(f"{op}_dpp v{v}, v{v}, v{v} {ctl} row_mask:0xf bank_mask:0xf")
        self.cross_reduce(op, [v], [t])

    def cross_reduce(self, op, vs, ts, swaps=("v_permlane16_swap_b32", "v_permlane32_swap_b32")):
        for sw in swaps:
            for v, t in zip(vs, ts):
                self(f"v_mov_b32 v{t}, v{v}")
            if len(vs) < 3:
                self("s_nop 1")
            for v, t in zip(vs, ts):
                self(f"{sw} v{v}, v{t}")
            for v, t in zip(vs, ts):
                self(f"{op} v{v}, v{v}, v{t}")

    def rbf(self, v):
        self.emit(rbf(v))


def rbf(v):
    return [f"v_cvt_pk_bf16_f32 v{v}, v{v}, v{v}", f"v_and_b32 v{v}, 0xffff0000, v{v}"]


def unpack(dst, src, n):
    out = []
    for i in range(n):
        out += [f"v_lshlrev_b32 v{dst+2*i}, 16, v{src+i}", f"v_and_b32 v{dst+2*i+1}, 0xffff0000, v{src+i}"]
    return out


def sigmoid(dst, src):
    return [f"v_mul_f32 v{dst}, {f32bits(-LOG2E):#x}, v{src}", f"v_exp_f32 v{dst}, v{dst}", "s_nop 0",
            f"v_add_f32 v{dst}, 1.0, v{dst}", f"v_rcp_f32 v{dst}, v{dst}", "s_nop 0"]


def mfma(d, A, B, c):
    return f"v_mfma_f32_16x16x32_bf16 {d}, {A}, {B}, {c}"


V_KA = 8
V_VA = 12
V_DK = 20
V_DV = 24
V_H = 26
V_T0 = 27
V_CW = 28
V_DWO = 30
V_L = 36
V_T = 40
V_NEGM = 48
V_S = 64
V_P = 96
V_O = 128
V_SX = 48
V_DX = 64
V_DW = 72
V_XA = 76
V_WA = 80
V_CS = 96
A_Q = 0
A_K = 64
A_V = 96
A_SUM = 128
A_CS = 128
A_HK = 144
A_WF = 144
A_XF = 208
A_ONES = 240
S_X, S_WQ, S_K, S_V, S_WS = 8, 12, 16, 20, 24
S_WAVE, S_HEAD, S_QBLK, S_W4096, S_OFF = 28, 29, 30, 31, 32
S_STEP, S_XOFF, S_WOFF, S_W8192, S_PASS, S_HM, S_RET = 33, 34, 35, 36, 37, 38, 39
S_DBG, S_T, S_WO = 44, 48, 52
S_KSW, S_KSO = 34, 35
S_U, S_RDY, S_KSE = 4, 5, 6
S_PK, S_FL = 63, 7
S_HOFF = 64
P_X, P_K, P_V, P_WQ, P_WO, P_WR, P_GATE, P_UP, P_DOWN, P_OUT, P_DBG, P_WS = 64, 66, 68, 70, 72, 76, 78, 80, 82, 84, 86, 88
S_IDX = 90

XBASE = [32768, 131072, 0]
WBASE = [98304, 114688, 65536]
QSCALE = (128 ** -0.5) * LOG2E
HK = 131072
WO_PAGES = [8, 9, 8, 9, 8, 9, 0, 4, 1, 5, 2, 8, 3, 6, 9, 7]
for _j in range(16, 32):
    WO_PAGES.append(WO_PAGES[_j - 10])
_AS = [9, 10, 11, 12, 13, 14, 15, 4, 5, 6, 7, 8, 0, 1, 2, 3]
WO_DST = [('a', 16 * x) for x in _AS] + [('v', 128), ('v', 144), ('v', 160), ('v', 8)] + [('a', 16 * x) for x in _AS[:12]]
WO_K = list(range(4, 20)) + [0, 1, 2, 3] + list(range(20, 32))
WO_J = {k: j for j, k in enumerate(WO_K)}
V_WR = 40
V_WE = 36


def srd(s):
    return f"s[{s}:{s+3}]"


def k_dma(j):
    return f"buffer_load_dwordx4 v{V_DK+j}, {srd(S_K)}, s{S_OFF} offen offset:{j*1024} lds"


def v_dma(j):
    return f"buffer_load_dwordx4 v{V_DV+(j&1)}, {srd(S_V)}, s{S_OFF} offen offset:{j*1024} lds"


def wo_dma(j, k, so=S_KSW):
    return f"buffer_load_dwordx4 v{V_DWO+j}, {srd(S_WO)}, s{so} offen offset:{j*1024} lds @wo{k}"


def wo_off(k, so=S_KSW):
    k = WO_K[k]
    return f"s_add_u32 s{so}, s{S_HOFF + k//4}, {(k % 4) * 32768}"


def wo_m0(k):
    return f"s_add_u32 m0, s{S_W4096}, {WO_PAGES[k]*16384}"


def wo_issue(k):
    return [wo_m0(k), wo_off(k)] + [wo_dma(j, k) for j in range(4)]


def wo_reads(k, early=False):
    pg = WO_PAGES[k]
    out = []
    for nb in range(4):
        for hf in range(2):
            f, d = WO_DST[k]
            d += nb * 4 + hf * 2
            reg = V_WE + nb if early else V_WR + (pg // 4) * 4 + nb
            out.append(f"ds_read_b64_tr_b16 {f}[{d}:{d+1}], v{reg} offset:{(pg%4)*16384 + hf*2048}")
    return out


def k_read(u, kb, t):
    off = ((u >> 1) & 3) * 16384 + ((u & 1) * 32 + kb * 16) * 256
    return f"ds_read_b128 {R('a', A_K + (kb*4+t)*4, 4)}, v{V_KA+t} offset:{off}"


def v_read(u, db, hf):
    off = ((u >> 1) & 3) * 16384 + ((u & 1) * 32 + hf * 16) * 256
    return f"ds_read_b64_tr_b16 {R('a', A_V + db*4 + hf*2, 2)}, v{V_VA+db} offset:{off}"


def qk_order():
    out = []
    for qb in range(4):
        for i in range(2):
            kb = i ^ (qb & 1) if OPT["snake"] else i
            ts = range(4) if (i == 0 or not OPT["snake"]) else range(3, -1, -1)
            out += [(qb, kb, t, n == 0) for n, t in enumerate(ts)]
    return out


def exp_order():
    out = []
    for qb, kb, t, first in qk_order():
        if first:
            out += [4 * (2 * qb + kb) + i for i in range(4)]
    return out


def qk_mfmas(first_c=None):
    out = []
    for qb, kb, t, first in qk_order():
        d = R('v', V_S + 4 * (2 * qb + kb), 4)
        c = (first_c or R('v', V_NEGM + 4 * qb, 4)) if first else d
        out.append(mfma(d, R('a', A_K + (kb * 4 + t) * 4, 4), R('a', A_Q + (qb * 4 + t) * 4, 4), c))
    return out


def pv_mfmas(u, first=False):
    pb = V_P + (u & 1) * 16
    out = []
    for qb in range(OPT["nsum"] - 1, -1, -1):
        s = R('a', A_SUM + 4 * qb, 4)
        out.append(mfma(s, R('a', A_ONES, 4), R('v', pb + 4 * qb, 4), "0" if first else s))
    for db in range(8):
        for i in range(4):
            qb = 3 - i if (OPT["snake"] and db & 1) else i
            o = R('v', V_O + (qb * 8 + db) * 4, 4)
            out.append(mfma(o, R('a', A_V + db * 4, 4), R('v', pb + 4 * qb, 4), "0" if first else o))
    return out


def sm_exp(n):
    return f"v_exp_f32 v{V_T + n % 8}, v{V_S + exp_order()[n]}"


def sm_cvt(u, n):
    return f"v_cvt_pk_bf16_f32 v{V_P + (u & 1) * 16 + exp_order()[n] // 2}, v{V_T + (n-1) % 8}, v{V_T + n % 8}"


def sm_add(n):
    l = V_L + n // 8
    return f"v_add_f32 v{l}, v{l}, v{V_T + n % 8}"


def period(p, first=False, hook=False, wok=None, kread=True, ek=None, er=None, last=False, touch=(), keep=False, prog=False):
    M = qk_mfmas() + pv_mfmas(p, first)
    n = len(M)
    gaps = [None] * n
    for i in range(8):
        gaps[i] = ("D", [v_read(p, i, 0), v_read(p, i, 1)])
    even = (p % 2 == 0)
    fixed = {}
    if even:
        fixed[32] = ["s_barrier"]
    step = 6 if ek is None else 4
    d0 = 36 if ek is None else 34
    d1 = d0 + 3 * step
    tag = f" @kv{28 + (p + 1) // 2 + (3 if even else 2)}" if last else ""
    for j in range(4):
        fixed[d0 + step * j] = [wo_dma(j, wok) if wok is not None else (k_dma if even else v_dma)(j) + tag]
    e0 = d1 + 4
    if ek is not None:
        for j in range(4):
            fixed[e0 + 4 * j] = [wo_dma(j, ek, S_KSE)]
    if er is not None:
        rd = wo_reads(er, early=True)
        for i in range(4):
            fixed[13 + 4 * i] = rd[2 * i:2 * i + 2]
    for i, t in enumerate(touch):
        fixed[13 + 8 * i] = [t]
    if keep:
        if OPT["keep"]:
            fixed[33] = [f"global_load_dword v6, v[{V_CW}:{V_CW+1}], off sc1"]
        if OPT["dyn"]:
            fixed[35] = [f"buffer_load_dword v34, v35, {srd(S_WS)}, s{S_FL} offen offset:32 sc1"]
    if prog:
        fixed[33] = ["s_and_b32 s98, s98, 0xffffff", f"s_add_u32 s98, s98, s{S_PK}", "v_mov_b32 v5, s98"]
        fixed[35] = [f"buffer_store_dword v5, v{V_T0}, {srd(S_WS)}, s59 offen offset:32 sc1"]
    A0 = 8 * OPT["nsum"]
    kq = [k_read(p + 2, kb, t) for kb in range(2) for t in range(4)] if kread else []
    ne = 0
    q = []
    LAG = 4
    for g in range(8, n):
        if g in fixed:
            gaps[g] = ("F", fixed[g])
            continue
        oldest = min([x[1] for x in q], default=ne)
        if ne % 2 == 1:
            oldest = min(oldest, ne - 1)
        can_e = ne < 32 and g >= 4 * (ne // 4) + 3 + LAG and (ne - oldest) < 8
        k_ok = bool(kq) and g > 32 and g <= n - 6
        want_x = len(q) + (1 if k_ok else 0) >= 2
        if k_ok and 2 * len([x for x in range(g, n - 5) if x not in fixed]) <= len(kq) + 1:
            gaps[g] = ("D", kq[:2])
            kq = kq[2:]
        elif can_e and not want_x:
            gaps[g] = ("E", [sm_exp(ne)])
            if ne >= A0:
                q.append((sm_add(ne), ne))
            if ne % 2 == 1:
                q.append((sm_cvt(p + 1, ne), ne - 1))
            ne += 1
        else:
            items = []
            kind = "V"
            if k_ok:
                items.append(kq.pop(0))
                kind = "D"
            while q and len(items) < 2:
                items.append(q.pop(0)[0])
            gaps[g] = (kind, items)
    assert ne == 32 and not q and not kq, (p, ne, q, kq)
    slot = (p // 2 + 3) & 3 if even else ((p + 1) // 2 + 2) & 3
    page = slot + (0 if even else 4)
    w0 = "s_waitcnt lgkmcnt(0)"
    if even:
        w0 = "s_waitcnt vmcnt(8) lgkmcnt(0)"
        if last:
            w0 = f"WAITVM kv{29 + p // 2} lgkmcnt(0)" if p < 6 else "s_waitcnt lgkmcnt(0)"
    salu = [(w0, 27, 31),
            (f"s_add_u32 m0, s{S_W4096}, {page*16384}", 8, d0 - 1),
            ("s_waitcnt lgkmcnt(0)", n - 3, n - 1)]
    if hook:
        salu.append((f"s_add_u32 s{S_HM}, s{S_HM}, s{S_HM}", n - 5, n - 1))
    if wok is not None:
        assert page == WO_PAGES[wok]
        salu.append((wo_off(wok), 8, d0 - 1))
    elif not even:
        salu.append((f"s_add_u32 s{S_OFF}, s{S_OFF}, 16384", d1 + 1, n - 6))
    if ek is not None:
        salu.append((wo_m0(ek), d1 + 1, e0 - 1))
        salu.append((wo_off(ek, S_KSE), 8, d0 - 1))
    if er is not None:
        salu.append((f"WAITVM wo{er}", 8, 12))
    if prog:
        salu.append(("s_memrealtime s[98:99]", 8, 14))
        salu.append((f"s_sub_u32 s{S_PK}, s{S_PK}, 0x1000000", 15, 22))
    used = set()
    pre = {}
    for text, lo, hi in salu:
        for g in range(hi, lo - 1, -1):
            if g not in used and gaps[g][0] in ("E", "V"):
                used.add(g)
                pre[g] = text
                break
        else:
            raise RuntimeError(f"no SALU slot for {text} in period {p}")
    out = []
    for g in range(n):
        out.append(M[g])
        if g in pre:
            out.append(pre[g])
        out += gaps[g][1]
    return out


def stamp(a, k):
    if OPT["stamp"] >= 2 or (OPT["stamp"] == 1 and k in (0, 3, 4, 11)):
        a(f"s_memrealtime s[40:41]\ns_waitcnt lgkmcnt(0)\nv_writelane_b32 v7, s40, {k}")
        a(f"s_memtime s[40:41]\ns_waitcnt lgkmcnt(0)\nv_writelane_b32 v7, s40, {k+16}")


def ln_stream():
    WR = 112

    def row(raw, X, acc, t, m, key, n):
        o = []

        def red(v):
            r = [f"v_add_f32_dpp v{v}, v{v}, v{v} {c} row_mask:0xf bank_mask:0xf"
                 for c in ("quad_perm:[1,0,3,2]", "quad_perm:[2,3,0,1]", "row_half_mirror", "row_mirror")]
            for sw in ("v_permlane16_swap_b32", "v_permlane32_swap_b32"):
                r += [f"v_mov_b32 v{t}, v{v}", f"{sw} v{v}, v{t}", f"v_add_f32 v{v}, v{v}, v{t}"]
            return r
        o += unpack(X, raw, 4)
        o += [f"v_add_f32 v{m}, v{X}, v{X+1}"] + [f"v_add_f32 v{m}, v{m}, v{X+i}" for i in range(2, 8)]
        o += red(m)
        o += [f"v_mul_f32 v{m}, {f32bits(1/512):#x}, v{m}"]
        for i in range(8):
            o += [f"v_sub_f32 v{t}, v{X+i}, v{m}", f"v_mul_f32 v{acc}, v{t}, v{t}" if i == 0 else f"v_fmac_f32 v{acc}, v{t}, v{t}"]
        o += red(acc)
        o += [f"v_mul_f32 v{acc}, {f32bits(1/512):#x}, v{acc}"] + rbf(m) + rbf(acc)
        o += [f"v_add_f32 v{acc}, {f32bits(1e-5):#x}, v{acc}"] + rbf(acc) + [f"v_sqrt_f32 v{acc}, v{acc}"] + rbf(acc)
        o += [f"v_lshrrev_b32 v{t}, 16, v{m}", f"v_or_b32 v{36+n}, v{t}, v{acc}", "STAT"]
        o += [f"v_rcp_f32 v{acc}, v{acc}"]
        o += [f"v_sub_f32 v{X+i}, v{X+i}, v{m}" for i in range(8)]
        o += [f"v_cvt_pk_bf16_f32 v{raw+i}, v{X+2*i}, v{X+2*i+1}" for i in range(4)]
        o += unpack(X, raw, 4)
        o += [f"v_mul_f32 v{X+i}, v{X+i}, v{acc}" for i in range(8)]
        o += [f"v_cvt_pk_bf16_f32 v{raw+i}, v{X+2*i}, v{X+2*i+1}" for i in range(4)]
        o += [f"buffer_store_dwordx4 v[{raw}:{raw+3}], v29, {srd(S_WS)}, s60 offen offset:{1024*n} sc1 @pub"]
        o += unpack(X, raw, 4)
        o += [f"v_mul_f32 v{acc}, v{X}, v{WR}"] + [f"v_fmac_f32 v{acc}, v{X+i}, v{WR+i}" for i in range(1, 8)]
        o += red(acc)
        o += [f"v_cvt_pk_bf16_f32 v{acc}, v{acc}, v{acc}", f"v_ashrrev_i32 v{t}, 31, v{acc}", f"v_or_b32 v{t}, 0x80000000, v{t}",
              f"v_xor_b32 v{acc}, v{acc}, v{t}", f"v_and_b32 v{acc}, 0xffff0000, v{acc}", f"v_or_b32 v{key}, s{62+n}, v{acc}"]
        return o
    A = row(84, 96, 120, 122, 124, 126, 0)
    B = row(88, 104, 121, 123, 125, 127, 1)
    w = unpack(WR, 92, 4)
    G = [[x, y] for x, y in zip(A, B)]
    i0 = A.index("STAT")
    return G[:i0], [w[i:i + 2] for i in range(0, 8, 2)] + G[i0 + 1:]


def stats_stream():
    ops = []
    for qb in range(4):
        m = V_SX + 4 * qb
        ops.append([f"v_lshlrev_b32 v{m}, 16, v{m+1}", f"v_and_b32 v{m+2}, 0xffff0000, v{m+1}", f"v_rcp_f32 v{m+2}, v{m+2}",
                    f"v_xor_b32 v{m}, 0x80000000, v{m}", f"v_mul_f32 v{m+2}, {f32bits(QSCALE):#x}, v{m+2}"])
    G = []
    for k in range(len(ops[0])):
        G += [[ops[0][k], ops[1][k]], [ops[2][k], ops[3][k]]]
    return G


def poll(a, name, load, check, ret=None):
    n0 = len(a.vm)
    ok = ret or f"L_{name}_ok"
    a(f"s_mov_b32 s57, 0\nL_{name}_chk:")
    a.emit(check)
    a(f"s_cbranch_scc1 {ok}")
    a(f"s_add_u32 s57, s57, 1\ns_cmp_gt_u32 s57, 0x40000\ns_cbranch_scc1 {ok}")
    a("s_sleep 1")
    a(load)
    a("s_waitcnt vmcnt(0)")
    a(f"s_branch L_{name}_chk")
    if ret is None:
        a(f"{ok}:")
    del a.vm[n0:]


KEYS_ADDR = "v_and_b32 v5, 7, v0\nv_lshlrev_b32 v5, 2, v5"
KEYS_LOAD = f"buffer_load_dword v{V_H}, v5, {srd(S_DBG)}, 0 offen offset:32 sc1"
KEYS_CHK = [f"v_cmp_ne_u32 vcc, 0, v{V_H}", "s_nop 0", "s_cmp_eq_u32 vcc_lo, -1"]


def ffn_weight_dma(a):
    a("v_lshrrev_b32 v5, 1, v1\nv_mul_u32_u24 v5, 3584, v5\nv_and_b32 v6, 1, v1\nv_lshl_add_u32 v5, v6, 4, v5")
    a(f"s_lshl_b32 s42, s{S_WAVE}, 2\ns_add_u32 s42, s42, s{S_STEP}\ns_sub_u32 s42, s42, 16\ns_lshl_b32 s3, s42, 10\ns_mul_i32 s42, s42, {32*3584}\ns_lshl_b32 s43, s{S_U}, 5\ns_add_u32 s42, s42, s43")
    for ptr, base in ((P_GATE, HK), (P_UP, HK + 16384)):
        a(f"s_add_u32 m0, s3, {base}")
        a.srd(S_T, ptr, 512 * 1792 * 2)
        a(f"buffer_load_dwordx4 v5, {srd(S_T)}, s42 offen lds")
    a(f"s_add_u32 s{S_STEP}, s{S_STEP}, 1")


def gen_hooks(a):
    S = V_S
    AW = A_HK + 16
    a("L_hook:")
    if OPT["stamp"] == 2:
        a("s_memtime s[100:101]")
    a(f"s_cmp_lt_u32 s{S_STEP}, 20\ns_cbranch_scc1 L_hk_m\ns_cmp_ge_u32 s{S_STEP}, 30\ns_cbranch_scc1 L_hk_r")
    for st in (21, 22, 23, 24):
        a(f"s_cmp_eq_u32 s{S_STEP}, {st}\ns_cbranch_scc1 L_h{st}")

    def done(nxt):
        a(f"s_mov_b32 s{S_STEP}, {nxt}\ns_branch L_hook_ret")
    a("L_h20:")
    a(KEYS_ADDR)
    a(KEYS_LOAD)
    a("v_lshrrev_b32 v5, 2, v3\nv_lshl_add_u32 v5, v4, 3, v5\nv_lshlrev_b32 v5, 5, v5\nv_and_b32 v6, 3, v3\nv_lshl_add_u32 v5, v6, 3, v5")
    a(f"v_lshl_add_u32 v5, v2, 12, v5\nv_add_u32 v5, {HK}, v5")
    for m in range(2):
        for ks in range(4):
            for hf in range(2):
                d = AW + m * 16 + ks * 4 + hf * 2
                a(f"ds_read_b64_tr_b16 a[{d}:{d+1}], v5 offset:{m*16384 + ks*1024 + hf*128}")
    done(21)
    a("L_h21:")
    a(KEYS_ADDR)
    poll(a, "h21", KEYS_LOAD, KEYS_CHK)
    a(f"v_and_b32 v6, 0x7ff, v{V_H}\nv_sub_u32 v6, 2047, v6\nv_lshlrev_b32 v6, 10, v6\nv_lshl_add_u32 v6, v4, 4, v6\ns_lshl_b32 s42, s{S_WAVE}, 8")
    assert WS_XN == 0
    for ks in range(4):
        a(f"buffer_load_dwordx4 a[{A_HK+4*ks}:{A_HK+4*ks+3}], v6, {srd(S_WS)}, s42 offen offset:{ks*64} sc1")
    done(22)
    a("L_h22:")
    for m in range(2):
        for ks in range(4):
            d = R('v', V_T + 4 * m, 4)
            a(mfma(d, R('a', AW + m * 16 + ks * 4, 4), R('a', A_HK + 4 * ks, 4), "0" if ks == 0 else d))
    a.srd(S_T, P_DOWN, 1792 * 512 * 2)
    a(f"v_lshlrev_b32 v6, 4, v1\ns_lshl_b32 s42, s{S_U}, 14\ns_add_u32 m0, s{S_W4096}, {HK + 16384}\ns_add_u32 s42, s42, s{S_W4096}")
    a(f"v_lshl_add_u32 v5, v2, 12, v6\nv_add_u32 v5, {HK}, v5")
    a(f"ds_write_b128 v5, v[{V_T}:{V_T+3}]\nds_write_b128 v5, v[{V_T+4}:{V_T+7}] offset:1024")
    for j in range(4):
        a(f"buffer_load_dwordx4 v6, {srd(S_T)}, s42 offen offset:{j*1024} lds")
    done(23)
    a("L_h23:")
    a(f"v_lshlrev_b32 v5, 4, v1\nv_add_u32 v5, {HK}, v5")
    for w in range(4):
        for m in range(2):
            d = S + (w * 2 + m) * 4
            a(f"ds_read_b128 v[{d}:{d+3}], v5 offset:{w*4096 + m*1024}")
    a("v_lshrrev_b32 v5, 2, v1\nv_lshlrev_b32 v5, 10, v5\nv_and_b32 v6, 3, v1\nv_lshl_add_u32 v5, v6, 3, v5")
    a(f"v_lshl_add_u32 v5, v2, 8, v5\nv_add_u32 v5, {HK + 16384}, v5")
    for i in range(8):
        a(f"ds_read_b64_tr_b16 a[{A_HK+2*i}:{A_HK+2*i+1}], v5 offset:{i*32}")
    a("v_and_b32 v5, 7, v1\nv_lshlrev_b32 v5, 11, v5\nv_lshl_add_u32 v5, v4, 4, v5\nv_lshl_add_u32 v5, v2, 9, v5\nv_bfe_u32 v6, v1, 3, 1\nv_lshl_add_u32 v5, v6, 6, v5")
    a(f"v_cmp_eq_u32 vcc, 1, v6\ns_lshl_b32 s42, s{S_U}, 14\ns_add_u32 s42, s42, {WS_YP}\ns_waitcnt lgkmcnt(8)")
    for i in range(0, 8, 2):
        a(f"v_pk_add_f32 v[{S+i}:{S+i+1}], v[{S+i}:{S+i+1}], v[{S+8+i}:{S+9+i}]\nv_pk_add_f32 v[{S+16+i}:{S+17+i}], v[{S+16+i}:{S+17+i}], v[{S+24+i}:{S+25+i}]")
    for i in range(0, 8, 2):
        a(f"v_pk_add_f32 v[{S+i}:{S+i+1}], v[{S+i}:{S+i+1}], v[{S+16+i}:{S+17+i}]")
    for i in range(4):
        a(f"v_cvt_pk_bf16_f32 v{S+8+i}, v{S+2*i}, v{S+2*i+1}")
    a.emit(unpack(S, S + 8, 4))
    sg = [sigmoid(S + 8 + i, S + i) for i in range(4)]
    for k in range(6):
        for i in range(4):
            if not sg[i][k].startswith("s_nop"):
                a(sg[i][k])
    for i in range(4):
        a(f"v_mul_f32 v{S+i}, v{S+i}, v{S+8+i}")
    a(f"v_cvt_pk_bf16_f32 v{S+8}, v{S}, v{S+1}\nv_cvt_pk_bf16_f32 v{S+9}, v{S+2}, v{S+3}")
    a.emit(unpack(S, S + 8, 2))
    for i in range(4):
        a(f"v_mul_f32 v{S+i}, v{S+i}, v{S+4+i}")
    a(f"v_cvt_pk_bf16_f32 v{V_T}, v{S}, v{S+1}\nv_cvt_pk_bf16_f32 v{V_T+1}, v{S+2}, v{S+3}\ns_waitcnt lgkmcnt(0)\ns_nop 0")
    for i in range(8):
        a(f"v_mfma_f32_16x16x16_bf16 v[{S+4*i}:{S+4*i+3}], a[{A_HK+2*i}:{A_HK+2*i+1}], v[{V_T}:{V_T+1}], 0")
    a("s_nop 2")
    for i in range(0, 8, 2):
        for r in range(4):
            a(f"v_cndmask_b32 v{S+4*i+r}, v{S+4*i+r}, v{S+4*i+4+r}, vcc")
        a(f"buffer_store_dwordx4 v[{S+4*i}:{S+4*i+3}], v5, {srd(S_WS)}, s42 offen offset:{i*64} sc1")
    done(24)
    a("L_h24:")
    a(f"s_lshl_b32 s42, s{S_U}, 2\ns_add_u32 s42, s42, {WS_FFLAG}\nv_mov_b32 v5, 1\nbuffer_store_dword v5, v{V_T0}, {srd(S_WS)}, s42 offen sc1")
    done(0)
    a("L_hk_r:")
    for st in (31, 32, 33, 34):
        a(f"s_cmp_eq_u32 s{S_STEP}, {st}\ns_cbranch_scc1 L_h{st}")
    ff_addr = f"v_min_u32 v5, 27, v1\nv_lshlrev_b32 v5, 2, v5\ns_mul_i32 s43, s{S_WAVE}, 112\ns_add_u32 s43, s43, {WS_FFLAG}"
    ff_load = f"buffer_load_dword v{V_H}, v5, {srd(S_WS)}, s43 offen sc1"
    a("L_h30:")
    a(ff_addr)
    a(ff_load)
    done(31)
    a("L_h31:")
    a(ff_addr)
    poll(a, "h31", ff_load, [f"v_cmp_eq_u32 vcc, 1, v{V_H}", "s_nop 0", "s_cmp_eq_u32 vcc_lo, -1"])
    a(KEYS_ADDR)
    a(KEYS_LOAD)
    a(f"v_lshrrev_b32 v5, 4, v0\nv_mul_u32_u24 v5, {7*16384}, v5\nv_lshl_add_u32 v5, v3, 4, v5")
    a(f"s_lshl_b32 s42, s{S_U}, 8\ns_add_u32 s42, s42, {WS_YP}")
    for i in range(7):
        if i:
            a("s_add_u32 s42, s42, 16384")
        a(f"buffer_load_dwordx4 a[{A_HK+4*i}:{A_HK+4*i+3}], v5, {srd(S_WS)}, s42 offen sc1")
    done(32)
    a("L_h32:")
    for i in range(28):
        a(f"v_accvgpr_read_b32 v{S+i}, a{A_HK+i}")
    for i in range(1, 7):
        for r in (0, 2):
            a(f"v_pk_add_f32 v[{S+r}:{S+r+1}], v[{S+r}:{S+r+1}], v[{S+4*i+r}:{S+4*i+r+1}]")
    a.cross_reduce("v_add_f32", [S + r for r in range(4)], [S + 4 + r for r in range(4)])
    a(f"v_lshlrev_b32 v5, 4, v0\nv_add_u32 v5, {HK}, v5\nds_write_b128 v5, v[{S}:{S+3}]")
    done(33)
    a("L_h33:")
    a(f"v_lshlrev_b32 v5, 4, v3\nv_add_u32 v5, {HK}, v5")
    for w in range(4):
        a(f"ds_read_b128 v[{S+4*w}:{S+4*w+3}], v5 offset:{w*1024}")
    a(f"s_lshr_b32 s43, s{S_U}, 3\nv_readlane_b32 s43, v{V_H}, s43\ns_lshl_b32 s42, s{S_U}, 7\ns_add_u32 s42, s42, {WS_UPD}")
    a(f"v_mov_b32 v6, s43\nv_ashrrev_i32 v{S+20}, 31, v6\nv_not_b32 v{S+20}, v{S+20}\nv_or_b32 v{S+20}, 0x80000000, v{S+20}\nv_xor_b32 v6, v6, v{S+20}\nv_and_b32 v6, 0xffff0000, v6")
    a.emit(sigmoid(S + 20, 6))
    a.rbf(S + 20)
    a(f"v_cmp_gt_u32 vcc, 16, v0\nv_lshlrev_b32 v5, 3, v0\nv_mov_b32 v6, {OOB}\nv_cndmask_b32 v5, v6, v5, vcc")
    a("s_waitcnt lgkmcnt(0)")
    for r in range(4):
        a(f"v_add_f32 v{S+r}, v{S+r}, v{S+4+r}\nv_add_f32 v{S+8+r}, v{S+8+r}, v{S+12+r}\nv_add_f32 v{S+r}, v{S+r}, v{S+8+r}")
        a.rbf(S + r)
        a(f"v_mul_f32 v{S+r}, v{S+r}, v{S+20}")
    a(f"v_cvt_pk_bf16_f32 v{S+4}, v{S}, v{S+1}\nv_cvt_pk_bf16_f32 v{S+5}, v{S+2}, v{S+3}")
    a(f"buffer_store_dwordx2 v[{S+4}:{S+5}], v5, {srd(S_WS)}, s42 offen sc1")
    done(34)
    a("L_h34:")
    a(f"s_and_b32 s42, s{S_U}, 7\ns_lshl_b32 s42, s42, 7\ns_lshr_b32 s43, s{S_U}, 3\ns_lshl_b32 s43, s43, 2\ns_add_u32 s42, s42, s43\ns_add_u32 s42, s42, {WS_UFLAG}")
    a(f"v_mov_b32 v5, 1\nbuffer_store_dword v5, v{V_T0}, {srd(S_WS)}, s42 offen sc1")
    done(0)
    a("L_hk_m:")
    a(f"s_cmp_eq_u32 s{S_STEP}, 0\ns_cbranch_scc1 L_hook_ret\ns_cmp_lt_u32 s{S_STEP}, 16\ns_cbranch_scc1 L_hk_m2")
    ffn_weight_dma(a)
    a(f"s_branch L_hook_ret\nL_hk_m2:\ns_cmp_eq_u32 s{S_STEP}, 11\ns_cbranch_scc1 L_h11")
    kl = (f"buffer_load_dwordx4 a[{A_HK}:{A_HK+3}], v5, {srd(S_WS)}, s42 offen sc1\n"
          f"buffer_load_dwordx4 a[{A_HK+4}:{A_HK+7}], v5, {srd(S_WS)}, s42 offen offset:16 sc1")
    a(f"L_h10:\nv_lshlrev_b32 v5, 5, v0\ns_mov_b32 s42, {WS_KEY}")
    a(kl)
    done(11)
    a(f"L_h11:\nv_lshlrev_b32 v5, 5, v0\ns_mov_b32 s42, {WS_KEY}")
    m = S + 8
    poll(a, "h11", kl, [f"v_accvgpr_read_b32 v{S+i}, a{A_HK+i}" for i in range(8)] +
         [f"v_min3_u32 v{m}, v{S}, v{S+1}, v{S+2}", f"v_min3_u32 v{m}, v{m}, v{S+3}, v{S+4}", f"v_min3_u32 v{m}, v{m}, v{S+5}, v{S+6}",
          f"v_min_u32 v{m}, v{m}, v{S+7}", f"v_cmp_ne_u32 vcc, 0, v{m}", "s_nop 0", "s_cmp_eq_u64 vcc, -1"])
    a(f"v_mov_b32 v{S+10}, 0")
    for k in range(8):
        a(f"v_max3_u32 v{m}, v{S}, v{S+1}, v{S+2}\nv_max3_u32 v{m}, v{m}, v{S+3}, v{S+4}\nv_max3_u32 v{m}, v{m}, v{S+5}, v{S+6}\nv_max_u32 v{m}, v{m}, v{S+7}")
        a.wave_reduce("v_max_u32", m, S + 9)
        if k < 7:
            for i in range(0, 8, 4):
                for j in range(4):
                    a(f"v_cmp_ne_u32 s[{92+2*j}:{93+2*j}], v{S+i+j}, v{m}")
                for j in range(4):
                    a(f"v_cndmask_b32 v{S+i+j}, 0, v{S+i+j}, s[{92+2*j}:{93+2*j}]")
        a(f"v_cmp_eq_u32 vcc, {k}, v1\ns_nop 1\nv_cndmask_b32 v{S+10}, v{S+10}, v{m}, vcc")
    a(f"v_lshlrev_b32 v5, 2, v0\nv_add_u32 v5, {HK}, v5\nds_write_b32 v5, v{S+10}\ns_waitcnt lgkmcnt(0)\ns_barrier")
    a(f"v_bfe_u32 v5, v1, 3, 2\nv_lshlrev_b32 v5, 8, v5\nv_and_b32 v6, 7, v1\nv_lshl_add_u32 v5, v6, 2, v5\nv_add_u32 v5, {HK}, v5")
    a(f"ds_read_b32 v{S}, v5\nv_mov_b32 v{S+1}, 0\ns_waitcnt lgkmcnt(0)")
    for j in range(0, 32, 4):
        for i in range(4):
            a(f"v_readlane_b32 s{40+i}, v{S}, {j+i}")
        for i in range(4):
            a(f"v_cmp_gt_u32 s[{92+2*i}:{93+2*i}], s{40+i}, v{S}")
        for i in range(4):
            a(f"v_addc_co_u32 v{S+1}, vcc, 0, v{S+1}, s[{92+2*i}:{93+2*i}]")
    a(f"v_cmp_gt_u32 vcc, 8, v{S+1}\nv_cmp_gt_u32 s[92:93], 32, v0\nv_lshlrev_b32 v5, 2, v{S+1}\nv_mov_b32 v6, {OOB}\ns_and_b64 vcc, vcc, s[92:93]\ns_nop 0\nv_cndmask_b32 v5, v6, v5, vcc")
    a(f"buffer_store_dword v{S}, v5, {srd(S_DBG)}, 0 offen offset:32 sc1")
    a(f"s_mov_b32 s{S_STEP}, 0")
    a("L_hook_ret:")
    if OPT["stamp"] == 2:
        a("s_memtime s[40:41]\ns_waitcnt lgkmcnt(0)\ns_sub_u32 s40, s40, s100\ns_mov_b32 m0, s56\ns_add_u32 s56, s56, 1\nv_writelane_b32 v7, s40, m0")
    a(f"s_cmp_eq_u32 s{S_RET}, 0\ns_cbranch_scc1 L_retA")
    a(f"s_cmp_lg_u32 s{S_HM}, 0\ns_cbranch_scc1 L_loop")


def hmask(hooks):
    m = 0
    for h in list(hooks) + [13]:
        m |= 1 << (31 - h)
    return m


def kv_first():
    G = []
    for tile in range(2):
        G.append(("S", f"s_add_u32 m0, s{S_W4096}, {tile*16384}"))
        G += [("D", k_dma(j) + f" @kv{tile}") for j in range(4)]
        G.append(("S", f"s_add_u32 m0, s{S_W4096}, {65536 + tile*16384}"))
        G += [("D", v_dma(j) + f" @kv{tile}") for j in range(4)]
        G.append(("S", f"s_add_u32 s{S_OFF}, s{S_OFF}, 16384"))
    return G


def kv2():
    G = [("S", f"s_add_u32 m0, s{S_W4096}, {2*16384}")]
    G += [("D", k_dma(j)) for j in range(4)]
    G.append(("S", f"s_add_u32 m0, s{S_W4096}, {65536 + 2*16384}"))
    G += [("D", v_dma(j)) for j in range(4)]
    G.append(("S", f"s_add_u32 s{S_OFF}, s{S_OFF}, 16384"))
    return G


def flat(a, G):
    for kind, ins in G:
        a(ins)
        if " m0," in ins:
            a("s_nop 0")


def gen_kernel(a):
    label = NAME + "_kernel"
    a(f".globl {label}\n.p2align 8\n.type {label},@function\n{label}:")
    a("s_cmp_ge_u32 s2, 256\ns_cbranch_scc1 L_end")
    a("s_load_dwordx16 s[64:79], s[0:1], 0\ns_load_dwordx8 s[80:87], s[0:1], 64\ns_load_dwordx2 s[88:89], s[0:1], 96")
    if OPT["stamp"]:
        a("v_mov_b32 v7, 0\ns_mov_b32 s56, 32")
    a(f"v_and_b32 v1, 63, v0\nv_lshrrev_b32 v2, 6, v0\nv_and_b32 v3, 15, v0\nv_readfirstlane_b32 s{S_WAVE}, v2\nv_lshrrev_b32 v4, 4, v1")
    a(f"s_and_b32 s{S_HEAD}, s2, 7\ns_lshl_b32 s{S_HEAD}, s{S_HEAD}, 2\ns_bfe_u32 s3, s2, 0x20003\ns_add_u32 s{S_HEAD}, s{S_HEAD}, s3")
    a(f"s_lshr_b32 s{S_QBLK}, s2, 5")
    a(f"s_lshl_b32 s{S_W4096}, s{S_WAVE}, 12\ns_lshl_b32 s{S_W8192}, s{S_WAVE}, 13")
    a("v_lshlrev_b32 v30, 4, v1\nv_lshl_add_u32 v29, v2, 11, v30\ns_lshl_b32 s60, s2, 13")
    a("v_lshrrev_b32 v5, 3, v1\nv_lshlrev_b32 v5, 10, v5\nv_and_b32 v6, 7, v1\nv_xor_b32 v6, v6, v4")
    a(f"v_lshl_add_u32 v{V_DX}, v6, 4, v5\nv_xor_b32 v{V_DX+1}, 64, v{V_DX}")
    for j in range(7, 0, -1):
        a(f"v_add_u32 v{V_DX+j}, {8192*j - 1024*(j&3)}, v{V_DX+(j&1)}")
    a(f"v_lshl_add_u32 v5, v2, 4, v4\nv_lshlrev_b32 v5, 13, v5\nv_lshlrev_b32 v6, 2, v4\nv_xor_b32 v6, v6, v3\nv_lshl_add_u32 v{V_DW}, v6, 4, v5")
    for j in range(1, 4):
        a(f"v_add_u32 v{V_DW+j}, {32768*j - 1024*j}, v{V_DW}")
    a(f"s_lshl_b32 s{S_XOFF}, s{S_QBLK}, 18\ns_lshl_b32 s3, s{S_WAVE}, 16\ns_add_u32 s{S_XOFF}, s{S_XOFF}, s3")
    a(f"s_lshl_b32 s{S_WOFF}, s{S_HEAD}, 8")
    a(f"s_mov_b32 s5, s{S_XOFF}\ns_mov_b32 s6, s{S_WOFF}")
    if OPT["rot"] >= 2:
        a(f"s_lshl_b32 s7, s{S_HEAD}, 1\ns_add_u32 s7, s7, s{S_QBLK}")
        if OPT["rot"] == 3:
            a("s_add_u32 s7, s7, s2")
        a("s_and_b32 s7, s7, 7\ns_lshl_b32 s7, s7, 7")
    else:
        a(f"s_and_b32 s7, s2, {7 if OPT['rot'] else 0}\ns_lshl_b32 s7, s7, 7")
    nxt = [f"s_add_u32 s{S_XOFF}, s5, s7", f"s_lshl_b32 s{S_WOFF}, s7, 12", f"s_add_u32 s{S_WOFF}, s{S_WOFF}, s6"]
    a.emit(nxt)
    a("s_waitcnt lgkmcnt(0)")
    stamp(a, 0)
    a.srd(S_X, P_X, 2097152)
    a.srd(S_WQ, P_WQ, 512 * 4096 * 2)
    a.srd(S_WS, P_WS, WS_SIZE)
    a("s_cmp_lg_u32 s2, 0\ns_cbranch_scc1 L_noclear")
    n0 = len(a.vm)
    a(f"v_lshlrev_b32 v5, 4, v0\nv_mov_b32 v120, 0\nv_mov_b32 v121, 0\nv_mov_b32 v122, 0\nv_mov_b32 v123, 0\ns_mov_b32 s3, {WS_KEY}")
    for i in range(6):
        a(f"buffer_store_dwordx4 v[120:123], v5, {srd(S_WS)}, s3 offen sc1\ns_add_u32 s3, s3, 4096")
    del a.vm[n0:]
    a("L_noclear:")

    def chunk_dma(c):
        sl = c % 3
        G = [("S", f"s_add_u32 m0, s{S_W4096}, {WBASE[sl]}")]
        for j in range(4):
            G.append(("D", f"buffer_load_dwordx4 v{V_DW+j}, {srd(S_WQ)}, s{S_WOFF} offen offset:{j*1024} lds @c{c}"))
        for hh in range(2):
            G.append(("S", f"s_add_u32 m0, s{S_W8192}, {XBASE[sl] + hh*4096}"))
            for j in range(4 * hh, 4 * hh + 4):
                G.append(("D", f"buffer_load_dwordx4 v{V_DX+j}, {srd(S_X)}, s{S_XOFF} offen offset:{(j&3)*1024} lds @c{c}"))
        G += [("S", x) for x in [f"s_add_u32 s7, s7, {128 if OPT['rot'] < 2 else (384 if c == 3 else 256)}", "s_and_b32 s7, s7, 1023"] + nxt]
        return G
    a.srd(S_T, P_WR, 1024)
    nclr = len(a.vm)
    a(f"buffer_load_dwordx4 v[84:87], v29, {srd(S_X)}, s60 offen @ln")
    a(f"buffer_load_dwordx4 v[88:91], v29, {srd(S_X)}, s60 offen offset:1024 @ln")
    flat(a, chunk_dma(0))
    if OPT["tx"]:
        assert OPT["rot"] == 1
        a(f"s_add_u32 s3, s2, 1\nv_bfe_u32 v5, v1, 2, 3\nv_add_u32 v5, s3, v5\nv_and_b32 v5, 7, v5\nv_lshlrev_b32 v5, 6, v5\nv_bfe_u32 v6, v1, 1, 1\nv_add_u32 v5, v5, v6")
        a(f"v_lshl_add_u32 v5, v2, 1, v5\nv_lshlrev_b32 v5, 13, v5\nv_and_b32 v6, 1, v1\nv_lshl_add_u32 v5, v6, 7, v5\ns_lshl_b32 s42, s{S_QBLK}, 16\ns_add_u32 s42, s42, s6")
        a(f"buffer_load_dword v26, v5, {srd(S_WQ)}, s42 offen")
        a(f"v_add_u32 v5, s3, v4\nv_and_b32 v5, 7, v5\nv_lshlrev_b32 v5, 7, v5\nv_lshl_add_u32 v5, v3, 10, v5\nv_lshl_add_u32 v39, v2, 14, v5")
        a(f"s_lshr_b32 s91, s2, 3\ns_lshl_b32 s91, s91, 16\nbuffer_load_dword v26, v39, {srd(S_X)}, s91 offen\nv_xor_b32 v39, 512, v39")
    a(f"buffer_load_dwordx4 v[92:95], v30, {srd(S_T)}, 0 offen @wr")
    a.srd(S_DBG, P_DBG, 256)
    a(f"s_cmp_lg_u32 s2, 0\ns_cbranch_scc1 L_nogo\nv_mov_b32 v5, 1\nv_lshlrev_b32 v6, 2, v2\ns_waitcnt vmcnt({len(a.vm) - nclr})")
    a(f"buffer_store_dword v5, v6, {srd(S_DBG)}, 0 offen sc1\nL_nogo:")
    a.vm.pop()
    if OPT["codewarm"]:
        a(f"s_cmp_lg_u32 s{S_WAVE}, 3\ns_cbranch_scc1 L_nowarm")
        a("s_getpc_b64 s[42:43]\nL_pc:\ns_bfe_u32 s3, s2, 0x30003\ns_lshl_b32 s3, s3, 13\nv_lshl_add_u32 v124, v1, 7, s3\nv_min_u32 v124, L_end-L_pc, v124")
        a("v_mov_b32 v125, s43\nv_add_co_u32 v124, vcc, s42, v124\ns_nop 1\nv_addc_co_u32 v125, vcc, 0, v125, vcc\nglobal_load_dword v26, v[124:125], off")
        a.vm.pop()
        a("L_nowarm:")
    for c in range(1, OPT["ninit"]):
        flat(a, chunk_dma(c))
    a(f"s_lshl_b32 s3, s{S_HEAD}, 19")
    a.srd(S_K, P_K, 524288, add_lo="s3")
    a.srd(S_V, P_V, 524288, add_lo="s3")
    if OPT["kvtouch"]:
        a(f"v_lshlrev_b32 v40, 4, v0\ns_lshl_b32 s92, s{S_QBLK}, 12")
        kvt = [f"buffer_load_dword v26, v40, {srd(S_K)}, s92 offen", f"buffer_load_dword v26, v40, {srd(S_V)}, s92 offen"]
        if not OPT["late_touch"]:
            a.emit(kvt)
    a.srd(S_WO, P_WO, 4096 * 512 * 2)
    a(f"v_mov_b32 v6, {OOB}\nv_cmp_eq_u32 vcc, 0, v0\nv_cmp_eq_u32 s[94:95], 0, v1\nv_lshlrev_b32 v5, 3, v2\nv_cndmask_b32 v{V_T0}, v6, 0, vcc\nv_cndmask_b32 v28, v6, v5, s[94:95]")
    a(f"s_lshl_b32 s61, s2, 5\ns_add_u32 s61, s61, {WS_KEY}")
    a(f"s_lshl_b32 s62, s2, 3\ns_lshl_b32 s3, s{S_WAVE}, 1\ns_add_u32 s62, s62, s3\ns_sub_u32 s62, 0x87ff, s62\ns_sub_u32 s63, s62, 1")
    a(f"s_lshr_b32 s59, s2, 3\ns_lshl_b32 s59, s59, 7\ns_and_b32 s3, s2, 7\ns_lshl_b32 s3, s3, 2\ns_add_u32 s59, s59, s3\ns_add_u32 s59, s59, {WS_FLAG}")
    a(f"s_and_b32 s3, s2, 7\ns_lshl_b32 s3, s3, 5\ns_lshr_b32 s{S_U}, s2, 3\ns_add_u32 s3, s3, s{S_U}\ns_sub_u32 s3, 255, s3\ns_sub_u32 s{S_U}, s3, 112")
    a(f"s_mov_b32 s{S_STEP}, 0\ns_mov_b32 s{S_HM}, {hmask([]):#x}\ns_mov_b32 s{S_PASS}, 0")
    a(f"s_cmp_lt_u32 s3, 176\ns_cselect_b32 s{S_STEP}, 30, s{S_STEP}\ns_cselect_b32 s{S_HM}, {hmask([9,10,11,12,13]):#x}, s{S_HM}")
    a(f"s_cmp_lt_u32 s3, 112\ns_cselect_b32 s{S_STEP}, 16, s{S_STEP}\ns_cselect_b32 s{S_HM}, {hmask([0,1,2,3,4,5,6,7]):#x}, s{S_HM}\ns_cselect_b32 s{S_U}, s3, s{S_U}")
    a(f"s_cmp_eq_u32 s2, 0\ns_cselect_b32 s{S_STEP}, 10, s{S_STEP}\ns_cselect_b32 s{S_HM}, {hmask([0,1]):#x}, s{S_HM}")
    a(f"s_lshl_b32 s42, s{S_WAVE}, 17")
    for i in range(8):
        a(f"s_add_u32 s3, s2, {1+i}\ns_and_b32 s3, s3, 7\ns_lshl_b32 s3, s3, 19\ns_add_u32 s{S_HOFF+i}, s3, s42")
    a("v_lshrrev_b32 v5, 1, v3\nv_xor_b32 v5, v5, v4\nv_lshlrev_b32 v5, 4, v5\nv_lshl_add_u32 v5, v3, 7, v5")
    a(f"v_lshl_add_u32 v{V_XA}, v2, 13, v5\nv_xor_b32 v{V_XA+1}, 64, v{V_XA}")
    a(f"v_add_u32 v{V_XA+2}, 131072, v{V_XA}\nv_add_u32 v{V_XA+3}, 131072, v{V_XA+1}")
    a("v_lshrrev_b32 v5, 2, v3\nv_lshl_add_u32 v5, v4, 3, v5\nv_lshlrev_b32 v5, 8, v5\nv_add_u32 v5, 65536, v5\nv_lshlrev_b32 v6, 6, v2")
    a(f"v_lshl_add_u32 v{V_WA}, v3, 4, v5\nv_xor_b32 v{V_WA}, v{V_WA}, v6")
    for t in range(1, 4):
        a(f"v_xor_b32 v{V_WA+t}, {64*t}, v{V_WA}")
    a(f"v_xor_b32 v5, v4, v3\nv_lshlrev_b32 v5, 4, v5\nv_lshl_add_u32 v{V_KA}, v3, 8, v5\nv_xor_b32 v{V_KA}, v{V_KA}, v6")
    for t in range(1, 4):
        a(f"v_xor_b32 v{V_KA+t}, {64*t}, v{V_KA}")
    a("v_lshrrev_b32 v5, 2, v1\nv_and_b32 v6, 7, v5\nv_lshlrev_b32 v6, 5, v6\nv_lshl_add_u32 v5, v5, 8, v6\nv_and_b32 v6, 3, v1")
    a(f"v_lshl_add_u32 v5, v6, 3, v5\nv_add_u32 v{V_VA}, 65536, v5")
    for db in range(1, 8):
        a(f"v_xor_b32 v{V_VA+db}, {32*db}, v{V_VA}")
    a("v_lshl_add_u32 v5, v2, 4, v4\nv_lshlrev_b32 v5, 8, v5\nv_xor_b32 v6, v3, v4")
    a(f"v_lshl_add_u32 v{V_DK}, v6, 4, v5")
    for j in range(1, 4):
        a(f"v_xor_b32 v{V_DK+j}, {64*j}, v{V_DK}")
    a(f"v_lshlrev_b32 v6, 1, v4\nv_xor_b32 v6, v6, v3\nv_lshl_add_u32 v{V_DV}, v6, 4, v5\nv_xor_b32 v{V_DV+1}, 128, v{V_DV}")
    a("v_and_b32 v5, 3, v1\nv_cmp_eq_u32 vcc, 0, v5\nv_mov_b32 v6, 0x3f803f80\ns_nop 0\nv_cndmask_b32 v5, 0, v6, vcc")
    for i in range(4):
        a(f"v_accvgpr_write_b32 a{A_ONES+i}, v5")
    a(f"s_add_u32 s58, s61, {WS_STAT - WS_KEY}\ns_lshl_b32 s90, s{S_QBLK}, 10\ns_lshl_b32 s3, s{S_WAVE}, 8\ns_add_u32 s90, s90, s3\ns_add_u32 s90, s90, {WS_STAT}\nv_lshlrev_b32 v38, 2, v3")
    a(f"v_lshl_add_u32 v30, v2, 13, v30\nv_add_u32 v30, {HK}, v30\nv_lshlrev_b32 v31, 8, v4\nv_lshl_add_u32 v31, v2, 13, v31")
    a(f"s_mov_b32 s{S_OFF}, 0")

    def step_reads(s):
        c, ks = s // 2, s % 2
        sl = c % 3
        b = s % 2
        out = []
        for qb in range(4):
            if sl == 1:
                reg, off = V_XA + 2 + ks, qb * 2048
            else:
                reg, off = V_XA + ks, XBASE[sl] + qb * 2048
            out.append(f"ds_read_b128 {R('a', A_XF + b*16 + qb*4, 4)}, v{reg} offset:{off}")
        for t in range(4):
            for half in range(2):
                for hf in range(2):
                    off = WBASE[sl] - 65536 + (32 * ks + 4 * hf) * 256 + 8 * half
                    out.append(f"ds_read_b64_tr_b16 {R('a', A_WF + b*32 + (2*t+half)*4 + hf*2, 2)}, v{V_WA+t} offset:{off}")
        return out

    def step_mfmas(s):
        b = s % 2
        M = []

        def acc(p, r):
            return (R(p, r, 4), "0" if s == 0 else R(p, r, 4))
        xf = lambda qb: R('a', A_XF + b * 16 + qb * 4, 4)
        wf = lambda T: R('a', A_WF + b * 32 + T * 4, 4)
        for T in range(2):
            d, c = acc('a', A_CS + 4 * T)
            M.append(mfma(d, wf(T), R('a', A_ONES, 4), c))
        order = [(T, qb) for T in range(8) for qb in (range(4) if T % 2 else range(3, -1, -1))]
        if s == 15:
            order = [(T, qb) for qb in range(4) for T in range(8)]
        for T, qb in order:
            d, c = acc('v', V_O + (qb * 8 + T) * 4)
            M.append(mfma(d, wf(T), xf(qb), c))
        return M

    a("WAITVM c0\ns_barrier")
    go_load = f"buffer_load_dwordx4 v[32:35], off, {srd(S_DBG)}, 0 sc1"
    go_chk = [["v_and_b32 v32, v32, v33", "v_and_b32 v34, v34, v35"], ["v_and_b32 v32, v32, v34"], ["v_readfirstlane_b32 s42, v32"], ["s_nop 0"], ["s_cmp_lg_u32 s42, 0"]]
    st_load = [f"buffer_load_dword v{V_SX+4*qb+1}, v38, {srd(S_WS)}, s90 offen offset:{64*qb} sc1" for qb in range(4)]
    st_chk = [[f"v_min3_u32 v39, v{V_SX+1}, v{V_SX+5}, v{V_SX+9}"], [f"v_min_u32 v39, v39, v{V_SX+13}"], ["v_cmp_ne_u32 vcc, 0, v39"], ["s_nop 0"], ["s_cmp_eq_u64 vcc, -1"]]
    stamp(a, 1)
    a.emit(step_reads(0))
    ln1, ln2 = ln_stream()
    dq = []
    for c in range(OPT["ninit"], 3):
        dq += chunk_dma(c)
    if OPT["tx"]:
        dq.append(("D", f"buffer_load_dword v26, v39, {srd(S_X)}, s91 offen"))
    if OPT["late_touch"]:
        dq += [("D", x) for x in kvt]
    fq = list(ln1)
    since = 99
    for s in range(16):
        pre = ["s_waitcnt lgkmcnt(0)"]
        if s % 2 == 1 and s < 15:
            c = (s + 1) // 2
            assert not any(f"@c{c}" in x[1] for x in dq)
            tags = f"c{c}"
            if s == 13:
                tags += ",pub"
                assert not fq
                dq.append(("D", f"buffer_store_dwordx2 v[126:127], v28, {srd(S_WS)}, s61 offen sc1"))
            pre = [f"WAITVM {tags} lgkmcnt(0)", "s_barrier"]
            if s == OPT["ststep"]:
                dq += [("D", x + " @st") for x in st_load]
            if c + 2 <= 7:
                dq += chunk_dma(c + 2)
            elif c == 6:
                dq += kv_first()
        if s == OPT["goload"]:
            dq.insert(0, ("D", go_load + " @go"))
        if s == OPT["gostep"]:
            fq += [["WAITVM go,wr"]] + go_chk[:3] + [[], go_chk[4] + ["s_cbranch_scc0 L_go_wait", "L_go_ok:"],
                                                     [f"V buffer_store_dwordx2 v[36:37], v28, {srd(S_WS)}, s58 offen sc1"]] + ln2
        if s == 14:
            fq += [["WAITVM st"]] + st_chk[:3] + [[], st_chk[4] + ["s_cbranch_scc0 L_st_wait", "L_st_ok:"]] + stats_stream()
            fq += [[f"v_add_u32 v{V_DX}, {HK}, v31", f"v_xor_b32 v{V_DX+1}, 8192, v31"],
                   [f"v_xor_b32 v{V_DX+2}, 16384, v31", f"v_xor_b32 v{V_DX+3}, 24576, v31"],
                   [f"v_add_u32 v{V_DX+1}, {HK}, v{V_DX+1}", f"v_add_u32 v{V_DX+2}, {HK}, v{V_DX+2}"],
                   [f"v_add_u32 v{V_DX+3}, {HK}, v{V_DX+3}"]]
        a.emit(pre)
        if OPT["stamp"] == 2:
            a(f"s_memtime s[40:41]\ns_waitcnt lgkmcnt(0)\nv_writelane_b32 v7, s40, {44+s}")
        M = step_mfmas(s)
        rd = step_reads(s + 1) if s < 15 else []
        special = {}
        if s == 15:
            assert not dq and not fq
            special = {8: [f"ds_write_b128 v30, a[{A_CS}:{A_CS+3}]"], 9: [f"ds_write_b128 v30, a[{A_CS+4}:{A_CS+7}] offset:1024"],
                       15: ["WAITVM kv0 lgkmcnt(0)", "s_barrier"]}
            cs = [f"ds_read_b128 v[{V_CS+4*T}:{V_CS+4*T+3}], v{V_DX + T//2} offset:{(T%2)*1024}" for T in range(8)]
            kr = [k_read(0, kb, t) for kb in range(2) for t in range(4)]
            for i in range(8):
                special[16 + 2 * i] = (cs + kr)[2 * i:2 * i + 2]
        nd = len([x for x in dq if x[0] == "D"])
        space = 2 if (s == 0 and OPT['ninit'] == 1) else 4
        for g, m in enumerate(M):
            a(m)
            since += 1
            if g in special:
                a.emit(special[g])
                continue
            if dq and dq[0][0] == "D" and since >= space and g % 2 == 1:
                a(dq.pop(0)[1])
                since = 0
                continue
            if dq and dq[0][0] == "S" and (space == 2 or not (rd and g % 2 == 0)):
                a(dq.pop(0)[1])
                while space == 2 and dq and dq[0][0] == "S":
                    a(dq.pop(0)[1])
            if rd and g % 2 == 0:
                a.emit(rd[:2])
                rd = rd[2:]
            elif fq:
                a.emit([x[2:] if x.startswith("V ") else x for x in fq.pop(0)])
        assert not rd
    stamp(a, 2)
    a("s_waitcnt lgkmcnt(0)")
    QK0 = qk_mfmas(first_c="0")
    dq = kv2()

    def fin_pk(qb):
        m = V_SX + 4 * qb
        for i in range(16):
            r = V_O + 32 * qb + 2 * i
            a(f"v_pk_fma_f32 v[{r}:{r+1}], v[{V_CS+2*i}:{V_CS+2*i+1}], v[{m}:{m+1}], v[{r}:{r+1}] op_sel_hi:[1,0,1]")
        for i in range(16):
            r = V_O + 32 * qb + 2 * i
            a(f"v_pk_mul_f32 v[{r}:{r+1}], v[{r}:{r+1}], v[{m+2}:{m+3}] op_sel_hi:[1,0]")

    def fin_cv(qb):
        out = []
        for i in range(16):
            r = V_O + 32 * qb + 2 * i
            out.append(f"v_cvt_pk_bf16_f32 v{r}, v{r}, v{r+1}")
            out.append(f"v_accvgpr_write_b32 a{A_Q + 16*qb + i}, v{r}")
        return out
    for qb in range(4):
        fin_pk(qb)
        cv = fin_cv(qb)
        if qb == 0:
            a.emit(cv)
        else:
            for i in range(8):
                a(QK0[8 * (qb - 1) + i])
                if dq and i % 2 == 0:
                    a(dq.pop(0)[1])
                a.emit(cv[4 * i:4 * i + 4])
    assert not dq

    def tile_max(qb):
        s0, m = V_S + 8 * qb, V_NEGM + 4 * qb
        return [f"v_max3_f32 v{m}, v{s0}, v{s0+1}, v{s0+2}", f"v_max3_f32 v{m}, v{m}, v{s0+3}, v{s0+4}",
                f"v_max3_f32 v{m}, v{m}, v{s0+5}, v{s0+6}", f"v_max_f32 v{m}, v{m}, v{s0+7}"]
    mx = tile_max(0) + tile_max(1) + tile_max(2)
    a.emit(mx[:2])
    mx = mx[2:]
    for i in range(8):
        a(QK0[24 + i])
        a.emit(mx[:2])
        mx = mx[2:]
    for kb in (1, 0):
        for t in range(3, -1, -1):
            a(k_read(1, kb, t))
    a.emit(tile_max(3))
    a.cross_reduce("v_max_f32", [V_NEGM + 4 * qb for qb in range(4)], [V_NEGM + 4 * qb + 1 for qb in range(4)])
    for i in range(32):
        a(f"v_sub_f32 v{V_S+i}, v{V_S+i}, v{V_NEGM + 4*(i//8)}")
    for qb in range(4):
        m = V_NEGM + 4 * qb
        for i in (3, 2, 1, 0):
            a(f"v_sub_f32 v{m+i}, 0, v{m}")
    a("v_lshrrev_b32 v5, 3, v1\nv_lshlrev_b32 v5, 10, v5\nv_and_b32 v6, 7, v1\nv_lshlrev_b32 v26, 1, v4\nv_xor_b32 v6, v6, v26\nv_lshl_add_u32 v5, v6, 4, v5")
    a(f"s_lshl_b32 s3, s{S_QBLK}, 7\nv_add_u32 v{V_DWO}, s3, v5")
    for j in range(1, 4):
        a(f"v_add_u32 v{V_DWO+j}, {8192*j - 1024*j}, v{V_DWO}")
    if OPT["wot1"]:
        a(f"v_lshlrev_b32 v5, 6, v0\ns_lshl_b32 s3, s2, 14\nbuffer_load_dword v34, v5, {srd(S_WO)}, s3 offen")
    a(f"s_lshr_b32 s{S_FL}, s{S_HEAD}, 2\ns_lshl_b32 s{S_FL}, s{S_FL}, 2\ns_add_u32 s{S_FL}, s{S_FL}, s{S_WAVE}\ns_lshl_b32 s{S_FL}, s{S_FL}, 7\ns_add_u32 s{S_FL}, s{S_FL}, {WS_FLAG}")
    a(f"s_mov_b32 s{S_PK}, 0x20000000")
    a("L_sm0:")
    a("v_and_b32 v35, 7, v1\nv_lshlrev_b32 v35, 2, v35")
    a(f"s_getpc_b64 s[42:43]\nL_pc2:\ns_lshr_b32 s3, s2, 3\ns_lshl_b32 s3, s3, 2\ns_add_u32 s3, s3, s{S_WAVE}\ns_lshl_b32 s3, s3, 8\ns_add_u32 s3, s3, L_hook-L_pc2")
    a(f"v_and_b32 v5, 1, v1\nv_lshl_add_u32 v5, v5, 7, s3\nv_min_u32 v5, L_end-L_pc2, v5\nv_mov_b32 v{V_CW+1}, s43\nv_add_co_u32 v{V_CW}, vcc, s42, v5\ns_nop 1\nv_addc_co_u32 v{V_CW+1}, vcc, 0, v{V_CW+1}, vcc")
    assert OPT["nsum"] == 4
    a("v_lshrrev_b32 v5, 2, v1\nv_bfe_u32 v6, v1, 3, 2\nv_lshlrev_b32 v6, 5, v6\nv_lshl_add_u32 v5, v5, 7, v6\nv_and_b32 v6, 3, v1\nv_lshl_add_u32 v5, v6, 3, v5")
    a(f"v_lshl_add_u32 v5, v2, 12, v5\nv_add_u32 v{V_WE}, {HK}, v5")
    for nb in range(1, 4):
        a(f"v_xor_b32 v{V_WE+nb}, {32*nb}, v{V_WE}")
    for i in range(0, 32, 4):
        for k in range(4):
            a(sm_exp(i + k))
        a("s_nop 0")
        a(sm_cvt(0, i + 1))
        a(sm_cvt(0, i + 3))
        if i >= 8 * OPT["nsum"]:
            l = V_L + i // 8
            if i % 8 == 0:
                a(f"v_add_f32 v{l}, v{V_T + i % 8}, v{V_T + (i+1) % 8}")
            else:
                a(sm_add(i))
                a(sm_add(i + 1))
            a(sm_add(i + 2))
            a(sm_add(i + 3))
    a("s_waitcnt lgkmcnt(0)")
    stamp(a, 3)
    a.emit(period(0, first=True))
    a(f"s_cmp_lg_u32 s{S_STEP}, 16\ns_cbranch_scc1 L_loop_p1")
    ffn_weight_dma(a)
    a("s_branch L_loop_p1")
    a("L_go_wait:")
    poll(a, "go", go_load, go_chk[0] + go_chk[1] + ["s_nop 0"] + go_chk[2] + ["s_nop 3"] + go_chk[4], ret="L_go_ok")
    a("L_st_wait:")
    poll(a, "st", "\n".join(st_load), sum(st_chk, []), ret="L_st_ok")
    a(".p2align 6\nL_loop:")
    for p in range(8):
        if p == 1:
            a("L_loop_p1:")
        a.emit(period(p, hook=(p % 4 == 3), keep=(p == 4), prog=(p == 2 and OPT['dyn'])))
        if OPT["stamp"] == 3 and p % 4 == 3:
            a("s_memtime s[40:41]\ns_mov_b32 m0, s56\ns_addk_i32 s56, 1\ns_waitcnt lgkmcnt(0)\nv_writelane_b32 v7, s40, m0".replace("s_addk_i32 s56, 1", "s_cselect_b32 s100, 1, 0\ns_add_u32 s56, s56, 1\ns_cmp_eq_u32 s100, 1"))
        if p == 3:
            a(f"s_cbranch_scc1 L_hookA\nL_retA:")
    a("s_cbranch_scc0 L_loop")
    a(f"s_mov_b32 s{S_RET}, 1\ns_branch L_hook")
    a(f"L_hookA:\ns_mov_b32 s{S_RET}, 0")
    gen_hooks(a)
    a("L_last:")
    a.vm += ["kv29"] * 8 + ["kv30"] * 8
    if OPT["dyn"]:
        a("v_add_u32 v34, -1, v34\nv_lshrrev_b32 v5, 2, v35\nv_and_or_b32 v34, v34, -8, v5\nv_and_b32 v6, 56, v1")
        for j in range(0, 8, 4):
            for i in range(4):
                a(f"v_readlane_b32 s{40+i}, v34, {j+i}")
            for i in range(4):
                a(f"v_cmp_lt_u32 s[{92+2*i}:{93+2*i}], s{40+i}, v34")
            for i in range(4):
                a(f"v_addc_co_u32 v6, vcc, 0, v6, s[{92+2*i}:{93+2*i}]")
        a(f"v_lshlrev_b32 v6, 2, v6\nds_permute_b32 v29, v6, v35\ns_lshl_b32 s42, s{S_WAVE}, 17\ns_waitcnt lgkmcnt(0)\nv_lshl_add_u32 v5, v29, 17, s42\ns_nop 0")
        for i in range(8):
            a(f"v_readlane_b32 s{S_HOFF+i}, v5, {i}")
    else:
        a(f"s_add_u32 s3, s2, 1\nv_add_u32 v29, s3, v1\nv_and_b32 v29, 7, v29\nv_lshlrev_b32 v29, 2, v29")
    touch = []
    if OPT["wot2"]:
        a(f"s_add_u32 s3, s2, s{S_WAVE}\ns_add_u32 s3, s3, 5\ns_and_b32 s3, s3, 7\ns_lshl_b32 s3, s3, 19\ns_lshr_b32 s42, s2, 3\ns_lshl_b32 s42, s42, 14\ns_add_u32 s42, s42, s3\ns_add_u32 s43, s42, 8192")
        a("v_lshlrev_b32 v5, 7, v1")
        touch = [f"buffer_load_dword v34, v5, {srd(S_WO)}, s{42+i} offen" for i in range(2)]
    for p in range(7):
        a.emit(period(p, last=True, wok=(p + 4 if p >= 2 else None), kread=(p < 6), ek=(p if p < 6 else 11),
                      er=(p - 2 if p >= 2 else None), touch=(touch[p:p + 1] if p < 2 else ())))
    for db in range(8):
        a(v_read(7, db, 0))
        a(v_read(7, db, 1))
    fl_load = lambda r: f"buffer_load_dword v{r}, v29, {srd(S_WS)}, s{S_FL} offen sc1"
    V_OA = 52
    V_FA = 56
    V_RL = 64
    V_ACC = 64
    V_OF = 128
    NST = 8
    M = pv_mfmas(7)
    T = {}
    for n_, j in enumerate((12, 13)):
        w = wo_issue(j)
        T[4 + 9 * n_] = w[:2]
        for i in range(4):
            T[5 + 9 * n_ + 2 * i] = [w[2 + i]]
    T[8] = [f"v_accvgpr_read_b32 v{V_RL+2*qb+1}, a{A_SUM+4*qb}" for qb in (3, 2)]
    T[10] = [f"v_accvgpr_read_b32 v{V_RL+2*qb+1}, a{A_SUM+4*qb}" for qb in (1, 0)]
    T[12] = [f"s_mov_b32 s3, {f32bits(2.0 ** OPT['thr']):#x}"] + [f"v_cmp_nlt_f32 s[{92+2*qb}:{93+2*qb}], v{V_RL+2*qb+1}, s3" for qb in (0, 1)]
    T[15] = [f"v_cmp_nlt_f32 s[{92+2*qb}:{93+2*qb}], v{V_RL+2*qb+1}, s3" for qb in (2, 3)]
    T[17] = ["s_or_b64 s[92:93], s[92:93], s[94:95]", "s_or_b64 s[96:97], s[96:97], s[98:99]", "v_lshlrev_b32 v5, 2, v2"]
    T[19] = ["s_or_b64 s[92:93], s[92:93], s[96:97]", "s_or_b32 s92, s92, s93", f"v_add_u32 v5, {7*16384}, v5"]
    T[21] = ["v_mov_b32 v6, s92", f"v_mov_b32 v{V_RL+8}, {7*16384}"]
    T[22] = ["ds_write_b32 v5, v6"]
    for qb in range(4):
        T[23 + qb] = [f"v_rcp_f32 v{V_RL+2*qb}, v{V_RL+2*qb+1}"]
    T[27] = ["WAITVM wo5 lgkmcnt(0)", "s_barrier"]
    rd5 = wo_reads(5, early=True)
    T[28] = [f"ds_read_b128 v[{V_RL+8}:{V_RL+11}], v{V_RL+8}"]
    for i in range(4):
        T[29 + i] = rd5[2 * i:2 * i + 2]
    wr_ = []
    for i in range(4):
        wr_ += [f"v_subrev_u32 v{V_WR+i}, {HK}, v{V_WE+i}", f"v_subrev_u32 v{V_WR+4+i}, 65536, v{V_WE+i}", f"v_mov_b32 v{V_WR+8+i}, v{V_WE+i}"]
    for i in range(4):
        T[i] = wr_[2 * i:2 * i + 2]
    T[33], T[34] = wr_[8:10], wr_[10:12]
    for g, m in enumerate(M):
        if g >= 4 and g % 4 == 0 and g < 28:
            db = g // 4 - 1
            a(f"s_waitcnt lgkmcnt({14 - 2*db + (1 if g > 22 else 0)})")
        a(m)
        a.emit(T.get(g, []))
    stamp(a, 4)
    a(f"s_waitcnt lgkmcnt(0)\nv_or3_b32 v6, v{V_RL+8}, v{V_RL+9}, v{V_RL+10}\nv_or_b32 v6, v6, v{V_RL+11}\nv_lshlrev_b32 v5, 4, v1\nv_readfirstlane_b32 s3, v6")
    a.emit(wo_issue(14))
    a(f"s_cmp_lg_u32 s{S_PASS}, 0\ns_cselect_b32 s3, 0, s3\ns_cmp_lg_u32 s3, 0\ns_cbranch_scc1 L_fallback")
    a("s_barrier")
    a.emit(wo_issue(15))
    a(f"s_lshl_b32 s3, s{S_QBLK}, 21\ns_lshl_b32 s42, s{S_WAVE}, 19\ns_add_u32 s3, s3, s42\ns_lshl_b32 s42, s{S_HEAD}, 12\ns_add_u32 s3, s3, s42\ns_add_u32 s3, s3, {WS_O}")
    blk = 0
    nmix = OPT["nmix"]
    nrd = max(10, nmix)
    for qb in range(4):
        for j in range(4):
            r = V_O + (qb * 8 + 2 * j) * 4
            if blk < nrd:
                a(f"WAITVM wo{6+blk}" + (" lgkmcnt(0)" if blk > nmix else ""))
                a.emit(wo_reads(6 + blk))
            for i in range(4):
                a(f"v_pk_mul_f32 v[{r+2*i}:{r+2*i+1}], v[{r+2*i}:{r+2*i+1}], v[{V_RL+2*qb}:{V_RL+2*qb+1}] op_sel_hi:[1,0]")
            for i in range(4):
                a(f"v_cvt_pk_bf16_f32 v{r+i}, v{r+2*i}, v{r+2*i+1}")
            a(f"buffer_store_dwordx4 v[{r}:{r+3}], v5, {srd(S_WS)}, s3 offen offset:{j*1024} sc1 @o")
            if blk < nmix:
                a("s_waitcnt lgkmcnt(0)")
                a.emit(wo_issue(16 + blk))
            blk += 1
        if qb < 3:
            a("s_add_u32 s3, s3, 131072")
    a("s_waitcnt lgkmcnt(0)")
    nxt_j = 16 + nmix
    while nxt_j < min(26, 16 + nmix + OPT["npre"]):
        a.emit(wo_issue(nxt_j))
        nxt_j += 1
    stamp(a, 5)
    a(f"s_lshl_b32 s3, s{S_HEAD}, 19\ns_add_u32 s3, s3, {WS_O}\nv_add_u32 v{V_OA}, s3, v5")
    for rb in range(1, 4):
        a(f"v_add_u32 v{V_OA+rb}, {131072*rb}, v{V_OA}")
    a(KEYS_ADDR)
    a(f"s_lshl_b32 s43, s{S_QBLK}, 7\ns_add_u32 s43, s43, {WS_UFLAG}")
    uf_load = f"buffer_load_dword v35, v5, {srd(S_WS)}, s43 offen sc1"

    def o_issue(k):
        st = (k + 3) % NST
        out = [f"buffer_load_dwordx4 v[{V_OF+st*16+rb*4}:{V_OF+st*16+rb*4+3}], v{V_OA+rb}, {srd(S_WS)}, s{S_KSO} offen offset:{(k%4)*1024} sc1 @o{k}"
               for rb in range(4)]
        pre = [f"s_lshr_b32 s{S_KSO}, s{S_HOFF + k//4}, 5"] if k % 4 == 0 else []
        return pre, out
    PF = 4

    def ring_fill():
        for k in range(PF + 1):
            pre, out = o_issue(k)
            a.emit(pre + out)
    rdy = lambda r: [f"v_cmp_eq_u32 vcc, 1, v{r}", "s_nop 0", f"s_or_b32 s{S_RDY}, s{S_RDY}, vcc_lo"]
    a(f"s_mov_b32 s{S_RDY}, 0\nv_mov_b32 v6, 1")
    a("WAITVM o\ns_barrier")
    a(f"buffer_store_dword v6, v{V_T0}, {srd(S_WS)}, s59 offen sc1")
    stamp(a, 6)
    while nxt_j < 26:
        a.emit(wo_issue(nxt_j))
        nxt_j += 1
    a(uf_load + " @uf")
    a(KEYS_LOAD + " @uf")
    a(fl_load(25) + " @uf")
    while nxt_j < 30:
        a(f"WAITVM wo{nxt_j-10}")
        a.emit(wo_reads(nxt_j - 10))
        a("s_waitcnt lgkmcnt(0)")
        a.emit(wo_issue(nxt_j))
        nxt_j += 1
    a("WAITVM uf")
    poll(a, "flag", fl_load(25), rdy(25) + [f"s_and_b32 s3, s{S_RDY}, 3", "s_cmp_eq_u32 s3, 3"])
    ring_fill()
    a("L_G:")
    stamp(a, 7)
    poll(a, "upd", uf_load + "\n" + KEYS_LOAD, ["v_cmp_eq_u32 vcc, 1, v35", "s_nop 0", "s_cmp_eq_u32 vcc_lo, -1"])
    a(f"v_and_b32 v{V_H}, 0x7ff, v{V_H}\ns_lshl_b32 s61, s{S_HEAD}, 6\ns_sub_u32 s61, 2047, s61")
    for t in range(8):
        a(f"v_readlane_b32 s{S_IDX+t}, v{V_H}, {t}")
    a(f"s_lshl_b32 s58, s{S_HEAD}, 16\ns_lshl_b32 s62, s{S_QBLK}, 7\ns_add_u32 s58, s58, s62\ns_add_u32 s62, s62, {WS_UPD}")
    prep = [["v_lshrrev_b32 v58, 3, v0", "v_and_b32 v59, 7, v0"], [f"v_lshlrev_b32 v{V_FA}, 10, v58", f"v_lshl_add_u32 v{V_FA}, v59, 4, v{V_FA}"],
            [f"v_add_u32 v{V_FA+1}, 32768, v{V_FA}", f"v_mov_b32 v60, {OOB}"], [f"v_mov_b32 v61, {OOB}", "v_sub_u32 v62, s61, v58"],
            ["v_subrev_u32 v63, 32, v62", "v_lshlrev_b32 v5, 4, v59"]]
    for t in range(8):
        prep += [[f"v_cmp_eq_u32 s[98:99], s{S_IDX+t}, v62", f"v_cmp_eq_u32 s[42:43], s{S_IDX+t}, v63"], [f"v_add_u32 v6, {1024*t}, v5"],
                 ["v_cndmask_b32 v60, v60, v6, s[98:99]", "v_cndmask_b32 v61, v61, v6, s[42:43]"]]
    fin = [f"buffer_load_dwordx4 v[16:19], v{V_FA}, {srd(S_WS)}, s58 offen sc1 @fin", f"buffer_load_dwordx4 v[36:39], v60, {srd(S_WS)}, s62 offen sc1 @fin",
           f"buffer_load_dwordx4 v[20:23], v{V_FA+1}, {srd(S_WS)}, s58 offen sc1 @fin", f"buffer_load_dwordx4 v[60:63], v61, {srd(S_WS)}, s62 offen sc1 @fin",
           f"buffer_load_dwordx4 v[8:11], v{V_FA}, {srd(S_X)}, s58 offen @finx", f"buffer_load_dwordx4 v[12:15], v{V_FA+1}, {srd(S_X)}, s58 offen @finx"]
    stamp(a, 8)

    gate = []
    for c in range(8):
        xn = 16 + c
        up = (36 + c) if c < 4 else (60 + c - 4)
        t = [24, 25, 26, 27]
        gate += [unpack(24, xn, 1), unpack(26, up, 1),
                 ["v_add_f32 v24, v24, v26", "v_add_f32 v25, v25, v27"],
                 [f"v_cvt_pk_bf16_f32 v{xn}, v24, v25"], unpack(24, xn, 1),
                 [f"v_mul_f32 v26, {f32bits(-LOG2E):#x}, v24", f"v_mul_f32 v27, {f32bits(-LOG2E):#x}, v25"],
                 ["v_exp_f32 v26, v26"], ["v_exp_f32 v27, v27"],
                 ["v_add_f32 v26, 1.0, v26", "v_add_f32 v27, 1.0, v27"],
                 ["v_rcp_f32 v26, v26"], ["v_rcp_f32 v27, v27"],
                 ["v_mul_f32 v24, v24, v26", "v_mul_f32 v25, v25, v27"],
                 [f"v_cvt_pk_bf16_f32 v{xn}, v24, v25"]]
    gate += [["v_and_b32 v5, 7, v3", "v_xor_b32 v5, v5, v4"], ["v_lshlrev_b32 v5, 4, v5", "v_lshl_add_u32 v5, v3, 8, v5"],
             ["v_lshl_add_u32 v24, v2, 12, v5", "v_xor_b32 v25, 64, v24"],
             ["v_lshlrev_b32 v5, 1, v59", "v_and_b32 v6, 7, v58"], ["v_xor_b32 v5, v5, v6", "v_lshlrev_b32 v5, 4, v5"],
             ["v_and_b32 v6, 15, v58", "v_lshl_add_u32 v5, v6, 8, v5"], ["v_lshrrev_b32 v6, 4, v58", "v_lshl_add_u32 v26, v6, 14, v5"],
             ["v_xor_b32 v27, 16, v26"]]
    waits = []
    extra = {4: fin[0], 5: fin[1], 6: fin[2], 7: fin[3], 28: fin[4], 29: fin[5]}
    w30, w31 = wo_issue(30), wo_issue(31)
    for i in range(4):
        extra[9 + 2 * i] = w30[2 + i]
        extra[17 + 2 * i] = w31[2 + i]
    jread = {k: k + 15 for k in range(5, 15)}
    jread[21], jread[29] = 30, 31
    for k in range(32):
        st = (k + 3) % NST
        jr = jread.get(k)
        tags = f"o{k}" + (f",wo{jr}" if jr is not None else "") + (",fin" if k == 13 else "")
        a(f"WAITVM {tags} lgkmcnt(0)")
        if OPT["stamp"] == 4 and k % 2 == 0:
            a(f"s_memtime s[40:41]\ns_waitcnt lgkmcnt(0)\nv_writelane_b32 v7, s40, {44+k//2}")
        fill = {}
        if k % 4 == 0 and 4 <= k <= 24:
            sl = (k + PF) // 4
            if k >= 8:
                a.emit(rdy(34 + ((k - 6) // 4) % 2))
            a(f"s_bitcmp1_b32 s{S_RDY}, {sl}\ns_cbranch_scc0 L_hw{sl}\nL_hw{sl}_ok:")
            waits.append(sl)
        if k % 4 == 2 and k <= 18:
            fill[10] = [fl_load(34 + (k // 4) % 2)]
        if jr is not None:
            rd = wo_reads(jr)
            for i in range(4):
                fill[1 + 4 * i] = rd[2 * i:2 * i + 2]
        if 1 <= k and k + PF < 32:
            pre, out = o_issue(k + PF)
            a.emit(pre)
            for i in range(4):
                fill[4 * i] = [out[i]]
        if k == 9:
            a.emit(w30[:2])
        if k == 17:
            a.emit(w31[:2])
        if k in extra:
            assert not prep or k < 4
            fill[6] = [extra[k]]
        order = [(nb, (3 - i if nb & 1 else i)) for nb in range(4) for i in range(4)]
        wr = []
        if k == 31:
            order = [(nb, rb) for rb in range(4) for nb in range(4)]
            assert not gate
            for rb in range(4):
                for nb in range(4):
                    r = V_ACC + (rb * 4 + nb) * 4
                    wr.append(f"ds_write_b128 v{24 + (nb&1)}, v[{r}:{r+3}] offset:{rb*16384 + (nb>>1)*128}")
            for g in range(8, 16):
                fill[g] = [wr.pop(0)]
        f_, d_ = WO_DST[WO_J[k]]
        for g, (nb, rb) in enumerate(order):
            d = R('v', V_ACC + (rb * 4 + nb) * 4, 4)
            a(mfma(d, R(f_, d_ + nb * 4, 4), R('v', V_OF + st * 16 + rb * 4, 4), "0" if k == 0 else d))
            if g in fill:
                a.emit(fill[g])
            elif prep:
                a.emit(prep.pop(0))
            elif gate and k >= 13:
                a.emit(gate.pop(0))
    a.emit(wr[:4])
    a.srd(S_T, P_OUT, 2097152)
    a.emit(wr[4:])
    stamp(a, 9)
    G0 = 128
    a.emit(unpack(G0, 16, 8))
    a("s_waitcnt lgkmcnt(0)\ns_barrier")
    for h in range(2):
        for w in range(4):
            for q in range(2):
                d = V_ACC + (h * 4 + w) * 8 + q * 4
                a(f"ds_read_b128 v[{d}:{d+3}], v{26+q} offset:{h*32768 + w*4096}")
    a("WAITVM finx")
    a.emit(unpack(G0 + 16, 8, 8))
    pk = lambda op, d, x, y: f"v_pk_{op}_f32 v[{d}:{d+1}], v[{x}:{x+1}], v[{y}:{y+1}]"
    for h in range(2):
        s = V_ACC + 32 * h
        a(f"s_waitcnt lgkmcnt({8 - 8*h})")
        for i in range(0, 8, 2):
            a(pk("add", s + i, s + i, s + 8 + i))
            a(pk("add", s + 16 + i, s + 16 + i, s + 24 + i))
        for i in range(0, 8, 2):
            a(pk("add", s + i, s + i, s + 16 + i))
        for op, other in (("mul", G0 + 8 * h), ("add", G0 + 16 + 8 * h)):
            for i in range(4):
                a(f"v_cvt_pk_bf16_f32 v{s+8+i}, v{s+2*i}, v{s+2*i+1}")
            a.emit(unpack(s, s + 8, 4))
            for i in range(0, 8, 2):
                a(pk(op, s + i, s + i, other + i))
        for i in range(4):
            a(f"v_cvt_pk_bf16_f32 v{s+8+i}, v{s+2*i}, v{s+2*i+1}")
        a(f"buffer_store_dwordx4 v[{s+8}:{s+11}], v{V_FA+h}, {srd(S_T)}, s58 offen")
    if OPT["stamp"]:
        stamp(a, 10)
        a("s_waitcnt vmcnt(0)")
        stamp(a, 11)
        a(f"v_lshlrev_b32 v5, 2, v0\ns_lshl_b32 s3, s2, 10\ns_add_u32 s3, s3, {WS_STAMP}")
        a(f"buffer_store_dword v7, v5, {srd(S_WS)}, s3 offen")
        if OPT.get("pad"):
            a(f"v_readlane_b32 s42, v7, 0\nL_pad:\ns_memrealtime s[40:41]\ns_waitcnt lgkmcnt(0)\ns_sub_u32 s40, s40, s42\ns_cmp_lt_u32 s40, {OPT['pad']}\ns_cbranch_scc1 L_pad")
        if OPT.get("dbgt"):
            a("s_cmp_lg_u32 s2, 9\ns_cbranch_scc1 L_nodbg")
            for i, (hi, lo) in enumerate(((11, 0), (27, 16), (3, 0), (4, 3))):
                a(f"v_readlane_b32 s40, v7, {hi}\nv_readlane_b32 s41, v7, {lo}\ns_nop 3\ns_sub_u32 s40, s40, s41\nv_mov_b32 v{8+i}, s40")
            a(f"buffer_store_dwordx4 v[8:11], off, {srd(S_DBG)}, 0 offset:16\nL_nodbg:")
    a("s_endpgm")
    for sl in waits:
        a(f"L_hw{sl}:\nv_mov_b32 v28, 0")
        poll(a, f"hw{sl}", fl_load(28), rdy(28) + [f"s_bitcmp1_b32 s{S_RDY}, {sl}"], ret=f"L_hw{sl}_ok")
    a("L_fallback:")
    a(f"s_mov_b32 s{S_PASS}, 1\ns_mov_b32 s{S_STEP}, 0\ns_mov_b32 s{S_HM}, {hmask([]):#x}\ns_mov_b32 s{S_OFF}, 0")
    for qb in range(4):
        a(f"v_mov_b32 v{V_NEGM+4*qb}, 0xff800000")
    a("v_and_b32 v5, 3, v1\nv_cmp_eq_u32 vcc, 0, v5\nv_mov_b32 v6, 0x3f803f80\ns_nop 0\nv_cndmask_b32 v5, 0, v6, vcc")
    for i in range(4):
        a(f"v_accvgpr_write_b32 a{A_ONES+i}, v5")
    a("s_waitcnt vmcnt(0) lgkmcnt(0)")
    a("L_fb_loop:")
    a(f"s_barrier\ns_mov_b32 m0, s{S_W4096}\ns_nop 0")
    for j in range(4):
        a(k_dma(j))
    a("s_waitcnt vmcnt(0)\ns_barrier")
    for u in range(2):
        for kb in range(2):
            for t in range(4):
                a(k_read(u, kb, t))
        a("s_waitcnt lgkmcnt(0)")
        a.emit(qk_mfmas(first_c="0"))
        a("s_nop 7")
        for qb in range(4):
            m = V_NEGM + 4 * qb
            for i in range(0, 8, 2):
                a(f"v_max3_f32 v{m}, v{m}, v{V_S+8*qb+i}, v{V_S+8*qb+i+1}")
    a(f"s_add_u32 s{S_OFF}, s{S_OFF}, 16384\ns_cmp_lt_u32 s{S_OFF}, 524288\ns_cbranch_scc1 L_fb_loop")
    a.cross_reduce("v_max_f32", [V_NEGM + 4 * qb for qb in range(4)], [V_NEGM + 4 * qb + 1 for qb in range(4)])
    for qb in range(4):
        m = V_NEGM + 4 * qb
        for i in (3, 2, 1, 0):
            a(f"v_sub_f32 v{m+i}, 0, v{m}")
    a(f"s_mov_b32 s{S_OFF}, 0\ns_barrier")
    flat(a, kv_first())
    flat(a, kv2())
    a("s_waitcnt vmcnt(0)\ns_barrier")
    for kb in range(2):
        for t in range(4):
            a(k_read(0, kb, t))
    a("s_waitcnt lgkmcnt(0)")
    a.emit(qk_mfmas())
    a("s_nop 7")
    for kb in range(2):
        for t in range(4):
            a(k_read(1, kb, t))
    a("s_branch L_sm0")
    a("L_end:\ns_endpgm")
    return f""".amdhsa_kernel {label}
  .amdhsa_next_free_vgpr 512
  .amdhsa_next_free_sgpr 102
  .amdhsa_accum_offset 256
  .amdhsa_group_segment_fixed_size 0
  .amdhsa_kernarg_size 104
  .amdhsa_user_sgpr_count 2
  .amdhsa_user_sgpr_kernarg_segment_ptr 1
  .amdhsa_system_sgpr_workgroup_id_x 1
.end_amdhsa_kernel"""


def build():
    a = Asm()
    hdr = ["; One fused kernel, 256 workgroups (one per CU). Emitted by the author's own generator script (hand-designed schedule).",
           "; @launch grid=(256,1,1) block=(256,1,1) lds=163840"]
    a('.amdgcn_target "amdgcn-amd-amdhsa--gfx950"\n.text')
    d = gen_kernel(a)
    return "\n".join(hdr) + "\n" + "\n".join(a.L) + '\n.section .rodata,"a"\n.p2align 6\n' + d + "\n"


if __name__ == "__main__":
    path = sys.argv[1] if len(sys.argv) > 1 else f"cdna_kernels/{NAME}.s"
    for arg in sys.argv[2:]:
        k, v = arg.split("=")
        OPT[k] = eval(v)
    open(path, "w").write(build())
```
